```python
import torch

def _softmax(x, axis=-1):
    return torch.softmax(x, dim=axis)

def _gelu(x):
    return torch.nn.functional.gelu(x, approximate='tanh')

def _silu(x):
    return torch.nn.functional.silu(x)

def _sigmoid(x):
    return torch.sigmoid(x)

def _layernorm(x, axis=-1, eps=1e-05):
    m = x.mean(dim=axis, keepdim=True)
    v = x.var(dim=axis, keepdim=True, unbiased=False)
    return (x - m) / torch.sqrt(v + eps)

def _scatter_add(tgt, idx, src, axis=0):
    return tgt.clone().index_add_(axis, idx, src)

def _segment_sum(src, seg, n):
    out = torch.zeros((n,) + src.shape[1:], dtype=src.dtype)
    return out.index_add_(0, seg, src)

def _pad(x, pw):
    flat = tuple((v for pair in reversed(pw) for v in pair))
    return torch.nn.functional.pad(x, flat)
kernel_name = 'gated_mix__ssm_conv_s4d__mixer_gmlp__prompt'

def setup_inputs():

    _w = lambda a: (lambda t: t.to(torch.bfloat16) if t.is_floating_point() else t)(torch.as_tensor(a))

    def _A_setup():
        Bsz, L, D, N = (1, 2048, 448, 256)
        return {'u': _w((lambda *s: torch.randn(*s, dtype=torch.bfloat16) * 0.05)(Bsz, L, D)), 'log_A_real': _w((lambda *s: torch.randn(*s, dtype=torch.bfloat16) * 3.2)(D, N) * 0.5), 'A_imag': _w((lambda *s: torch.randn(*s, dtype=torch.bfloat16) * 0.05)(D, N) * 3.14), 'C_real': _w((lambda *s: torch.randn(*s, dtype=torch.bfloat16) * 1.6)(D, N) / N ** 0.5), 'C_imag': _w((lambda *s: torch.randn(*s, dtype=torch.bfloat16) * 1.6)(D, N) / N ** 0.5), 'log_dt': _w((lambda *s: torch.randn(*s, dtype=torch.bfloat16) * 0.05)(D) * 0.5 - 4.0), 'D_skip': _w((lambda *s: torch.randn(*s, dtype=torch.bfloat16) * 0.2)(D))}
    _A_in = _A_setup()

    def _B_setup():
        B, S, D, F = (1, 2048, 448, 1792)
        Fh = F // 2
        return {'x': _w((lambda *s: torch.randn(*s, dtype=torch.bfloat16) * 0.05)(B, S, D)), 'w_in': _w((lambda *s: torch.randn(*s, dtype=torch.bfloat16) * 0.2)(D, 2 * Fh)), 'w_sp': _w(0.01 * (lambda *s: torch.randn(*s, dtype=torch.bfloat16) * 0.2)(S, S)), 'b_sp': _w(1.0 + 0.01 * (lambda *s: torch.randn(*s, dtype=torch.bfloat16) * 0.05)(S)), 'w_out': _w((lambda *s: torch.randn(*s, dtype=torch.bfloat16) * 0.05)(Fh, D))}
    _B_in = _B_setup()
    return {'A_u': _A_in['u'], 'A_log_A_real': _A_in['log_A_real'], 'A_A_imag': _A_in['A_imag'], 'A_C_real': _A_in['C_real'], 'A_C_imag': _A_in['C_imag'], 'A_log_dt': _A_in['log_dt'], 'A_D_skip': _A_in['D_skip'], 'B_x': _B_in['x'], 'B_w_in': _B_in['w_in'], 'B_w_sp': _B_in['w_sp'], 'B_b_sp': _B_in['b_sp'], 'B_w_out': _B_in['w_out'], 'gate_w': _w((lambda *s: torch.randn(*s, dtype=torch.bfloat16) * 0.05)(448) * 16.0)}

def reference(A_u, A_log_A_real, A_A_imag, A_C_real, A_C_imag, A_log_dt, A_D_skip, B_x, B_w_in, B_w_sp, B_b_sp, B_w_out, gate_w):

    def _A_ref(u, log_A_real, A_imag, C_real, C_imag, log_dt, D_skip):
        L = u.shape[1]
        dt = torch.exp(log_dt)
        A = -torch.exp(log_A_real) + 1j * A_imag
        C = (C_real + 1j * C_imag) * dt[:, None]
        pos = (lambda x, dt: x.to(dt))(torch.arange(L), log_dt.dtype)
        P = torch.exp((A * dt[:, None])[:, :, None] * pos[None, None, :])
        K = 2.0 * torch.einsum('dn,dnl->dl', C, P).real
        L2 = 2 * L
        u_t = (lambda x, *d: x.permute(*d))(u, 0, 2, 1)
        Kf = (lambda x, *a, **k: torch.fft.rfft(x.float(), *a, **k))(K, L2)
        Uf = (lambda x, *a, **k: torch.fft.rfft(x.float(), *a, **k))(u_t, L2)
        y = (lambda x, *a, **k: torch.fft.irfft(x, *a, **k).to(torch.bfloat16))(Uf * Kf[None, :, :], L2)[:, :, :L]
        y = (lambda x, *d: x.permute(*d))(y, 0, 2, 1)
        return y + u * D_skip[None, None, :]

    def _B_ref(x, w_in, w_sp, b_sp, w_out):
        B, S, D = x.shape
        F = w_in.shape[-1]
        Fh = F // 2
        z = _gelu(torch.einsum('bsd,df->bsf', x, w_in))
        z1 = z[..., :Fh].clone()
        z2 = _layernorm(z[..., Fh:], axis=-1)
        g = torch.einsum('ts,bsf->btf', w_sp, z2) + b_sp[None, :, None]
        return torch.einsum('bsf,fd->bsd', z1 * g, w_out)
    x = A_u
    g = _sigmoid((x * gate_w).sum(-1, keepdims=True))
    a = _A_ref(x, A_log_A_real, A_A_imag, A_C_real, A_C_imag, A_log_dt, A_D_skip)
    b = _B_ref(x, B_w_in, B_w_sp, B_b_sp, B_w_out)
    return g * a + (1 - g) * b
```

```python
import re

TRANS = ('v_exp_f32','v_log_f32','v_rcp_f32','v_rsq_f32','v_sqrt_f32','v_sin_f32','v_cos_f32','v_rcp_iflag_f32')

def regs_of(tok):
    tok = tok.strip()
    tok = tok.lstrip('-')
    m = re.fullmatch(r'abs\((.*)\)', tok) or re.fullmatch(r'\|(.*)\|', tok)
    if m: tok = m.group(1)
    m = re.fullmatch(r'([vas])\[(\d+):(\d+)\]', tok)
    if m: return {(m.group(1), i) for i in range(int(m.group(2)), int(m.group(3))+1)}
    m = re.fullmatch(r'([vas])(\d+)', tok)
    if m: return {(m.group(1), int(m.group(2)))}
    if tok == 'vcc': return {('s','vcc_lo'),('s','vcc_hi')}
    if tok in ('vcc_lo','vcc_hi'): return {('s',tok)}
    if tok == 'exec': return {('s','exec')}
    if tok in ('exec_lo','exec_hi'): return {('s','exec')}
    if tok == 'm0': return {('s','m0')}
    return set()

def split_ops(rest):
    ops=[]; depth=0; cur=''
    for ch in rest:
        if ch in '[(': depth+=1
        if ch in '])': depth-=1
        if ch==',' and depth==0: ops.append(cur.strip()); cur=''
        else: cur+=ch
    if cur.strip(): ops.append(cur.strip())
    mods=[]
    if ops:
        parts=ops[-1].split()
        ops[-1]=parts[0]; mods=parts[1:]
    return ops,mods

class Ins:
    __slots__=('text','mn','ops','mods','kind','wr','rd','passes','srcc','ab','dpp','trans','ws','storedata','lds')
    def __init__(s,text):
        s.text=text
        t=text.split(';')[0].strip()
        p=t.split(None,1); s.mn=p[0]; rest=p[1] if len(p)>1 else ''
        s.ops,s.mods=split_ops(rest)
        mn=s.mn; R=lambda l:set().union(*[regs_of(x) for x in l]) if l else set()
        s.passes=0; s.srcc=set(); s.ab=set(); s.dpp=False; s.trans=False; s.ws=1; s.storedata=set(); s.lds=False
        if mn.startswith('v_mfma'):
            s.kind='mfma'; s.wr=regs_of(s.ops[0]); s.ab=R(s.ops[1:3]); s.srcc=regs_of(s.ops[3]); s.rd=s.ab|s.srcc
            s.passes=8 if '32x32' in mn else 4
        elif mn.startswith('v_'):
            s.kind='valu'
            base=mn.replace('_e32','').replace('_e64','').replace('_dpp','').replace('_sdwa','')
            s.trans=base in TRANS
            s.dpp = mn.endswith('_dpp') or any(m.startswith(('row_','quad_perm','wave_')) for m in s.mods)
            nd=1
            if base in ('v_add_co_u32','v_sub_co_u32','v_addc_co_u32','v_subb_co_u32','v_mad_u64_u32','v_div_scale_f32'): nd=2
            s.wr=R(s.ops[:nd]); s.rd=R(s.ops[nd:])
            if base.startswith(('v_fmac','v_pk_fmac','v_dot2c')) or s.dpp or base.startswith('v_writelane'): s.rd|=regs_of(s.ops[0])
            if base=='v_swap_b32' or base.startswith('v_permlane') and 'swap' in base: s.wr=R(s.ops[:2]); s.rd=R(s.ops[:2])
            if base.startswith('v_cmpx'): s.wr|={('s','exec')}
            if base=='v_cndmask_b32' and len(s.ops)==3: s.rd|=regs_of('vcc')
        elif mn.startswith('ds_'):
            s.kind='ds'
            if mn.startswith(('ds_read','ds_bpermute','ds_permute','ds_swizzle')): s.wr=regs_of(s.ops[0]); s.rd=R(s.ops[1:])
            else: s.wr=set(); s.rd=R(s.ops)
        elif mn.startswith(('buffer_','global_','flat_')):
            s.kind='vmem'
            s.lds = 'lds' in s.mods or '_lds_' in mn
            if mn in('buffer_inv','buffer_wbl2'): s.wr=set(); s.rd=set()
            elif mn.startswith('buffer_load'):
                if s.lds: s.wr=set(); s.rd=R(s.ops)|{('s','m0')}
                else: s.wr=regs_of(s.ops[0]); s.rd=R(s.ops[1:])
            elif mn.startswith('global_load'):
                if s.lds: s.wr=set(); s.rd=R(s.ops)|{('s','m0')}
                else: s.wr=regs_of(s.ops[0]); s.rd=R(s.ops[1:])
            elif mn.startswith('buffer_store'):
                s.wr=set(); s.rd=R(s.ops)
                if mn.endswith(('x3','x4')): s.storedata=regs_of(s.ops[0])
            elif mn.startswith('global_store'):
                s.wr=set(); s.rd=R(s.ops)
                if mn.endswith(('x3','x4')): s.storedata=regs_of(s.ops[1])
            else:
                s.wr=set(); s.rd=R(s.ops)
        elif mn.startswith('s_'):
            s.kind='salu'
            if mn=='s_nop': s.ws=int(s.ops[0],0)+1; s.wr=set(); s.rd=set()
            elif mn.startswith(('s_waitcnt','s_barrier','s_branch','s_cbranch','s_endpgm','s_setprio','s_sleep')): s.wr=set(); s.rd=set()
            elif mn.startswith('s_cmp'): s.wr=set(); s.rd=R(s.ops)
            else:
                s.wr=regs_of(s.ops[0]) if s.ops else set(); s.rd=R(s.ops[1:])
                if 'saveexec' in mn: s.wr|={('s','exec')}
        else:
            raise ValueError('unknown instruction '+text)

def need(prod, cons):
    n=0
    vw={r for r in prod.wr if r[0] in 'va'}; sw={r for r in prod.wr if r[0]=='s'}
    if prod.kind=='valu':
        if cons.kind=='mfma' and vw & cons.rd: n=max(n,2)
        if cons.kind=='mfma' and ('s','exec') in sw: n=max(n,4)
        if cons.kind=='valu':
            if cons.dpp and vw & cons.rd: n=max(n,2)
            if cons.dpp and ('s','exec') in sw: n=max(n,5)
            if cons.mn.startswith('v_permlane') and vw & cons.rd: n=max(n,2)
            if cons.mn.startswith(('v_readlane','v_readfirstlane')) and vw & cons.rd: n=max(n,1)
            if cons.mn.startswith(('v_readlane','v_readfirstlane','v_writelane','v_permlane')) and ('s','exec') in sw: n=max(n,4)
            if prod.trans and not cons.trans and vw & cons.rd: n=max(n,1)
            if sw & cons.rd: n=max(n,4 if cons.mn.startswith(('v_readlane','v_writelane')) else 2)
            if 'sdwa' in prod.mn and vw & (cons.rd|cons.wr): n=max(n,1)
            if any(m.startswith('op_sel') for m in prod.mods) and not prod.mn.startswith('v_pk') and vw & (cons.rd|cons.wr): n=max(n,1)
        if cons.kind=='vmem' and sw & cons.rd: n=max(n,5)
        if cons.kind=='salu' and sw & cons.rd: n=max(n,1)
        if cons.mn.startswith('s_cbranch_vcc') and (('s','vcc_lo') in sw): n=max(n,1)
    if prod.kind=='mfma':
        P=prod.passes; far={4:8,8:12}[P]
        if cons.kind=='mfma':
            if vw & cons.ab: n=max(n,far)
            if vw & cons.srcc and not (cons.srcc==vw and cons.passes==P): n=max(n,{4:6,8:10}[P])
            if vw & cons.wr and not (vw & cons.srcc): n=max(n,far)
        elif cons.kind in('valu','ds','vmem'):
            if vw & (cons.rd|cons.wr): n=max(n,far)
            if cons.kind=='valu' and prod.srcc & cons.wr: n=max(n,{4:3,8:7}[P])
    if prod.kind=='salu':
        if ('s','m0') in sw and (cons.lds or 'addtid' in cons.mn): n=max(n,1)
    if prod.kind=='vmem' and prod.storedata:
        if prod.storedata & cons.wr: n=max(n,2 if cons.kind=='valu' else 1)
    return n

class Asm:
    def __init__(s):
        s.lines=[]
        s.vm=0; s.lg=0
        s.vmd=0; s.lgd=0
        s.nops=0
    def raw(s,t): s.lines.append(t)
    def label(s,n): s.lines.append(n+':')
    def c(s,t): s.lines.append('; '+t)
    def __call__(s,text):
        tk=None
        for t in text.strip().split('\n'):
            t=t.strip()
            if not t or t.startswith(';'): continue
            i=Ins(t); s.lines.append(i)
            if i.kind=='vmem': s.vm+=1; tk=('vm',s.vm)
            if i.kind=='ds': s.lg+=1; tk=('lg',s.lg)
            if i.mn=='s_waitcnt':
                m=re.search(r'vmcnt\((\d+)\)',t)
                if m: s.vmd=max(s.vmd,s.vm-int(m.group(1)))
                m=re.search(r'lgkmcnt\((\d+)\)',t)
                if m: s.lgd=max(s.lgd,s.lg-int(m.group(1)))
        return tk
    def wait(s,*tks,extra=''):
        vm=[t[1] for t in tks if t and t[0]=='vm' and t[1]>s.vmd]; lg=[t[1] for t in tks if t and t[0]=='lg' and t[1]>s.lgd]
        p=[]
        if vm:
            n=s.vm-max(vm); assert n>=0
            if n<63: p.append(f'vmcnt({n})')
            else: raise ValueError('vmcnt too deep')
        if lg:
            n=s.lg-max(lg)
            p.append(f'lgkmcnt({min(n,15)})')
        if p: s('s_waitcnt '+' '.join(p))
    def finish(s):
        out=[]; hist=[]
        for l in s.lines:
            if isinstance(l,str):
                out.append(l); continue
            if l.kind!='salu' or l.rd or l.mn.startswith('s_cbranch'):
                dist=0; pad=0
                for p in reversed(hist[-24:]):
                    nd=need(p,l)
                    if nd>dist: pad=max(pad,nd-dist)
                    dist+=p.ws
                    if dist>=20: break
                if pad:
                    nop=Ins(f's_nop {pad-1}'); out.append('    '+nop.text); hist.append(nop); s.nops+=1
            out.append('    '+l.text); hist.append(l)
        return '\n'.join(out)+'\n'
```

```python
import sys, struct
from asmlib import *
NAME='gated_mix__ssm_conv_s4d__mixer_gmlp__prompt_kernel'
def f2u(x): return '0x%08x'%struct.unpack('<I',struct.pack('<f',x))[0]

WS_Z2N=0; WS_H=0x400000; WS_UT=0x800000; WS_AT=0xA00000; WS_WT=0xC00000; WS_GATE=0xD00000
WS_STAT=0xD10000; WS_ZF=0xE00000; WS_HF=0xE08000; WS_AF=0xE10000; WS_XF=0xE18000; WS_DBG=0xF00000
XT=0; WR=57344; Z1=0; TB=16384; TBW=57*544; KC=TB+4*TBW; RC=16384; UT=RC+8*4160; RED=UT+2*4608
LDS_BYTES=155648
assert KC+4*2816<=LDS_BYTES and RED+24576<=LDS_BYTES
SPIN=200000
LOG2E=1.4426950408889634
K0=-2*0.7978845608028654*LOG2E; K1=K0*0.044715
P=lambda i:f's[{40+2*i}:{41+2*i}]'
pX,pLA,pAI,pCR,pCI,pLDT,pDSK,_,pWI,pWSP,pBSP,pWO,pGW,pOUT,pDBG,pWS=range(16)
sX,sWI,sSP,sWS,sO='s[8:11]','s[12:15]','s[16:19]','s[20:23]','s[24:27]'
RB,CB,WV,NONCE='s28','s29','s30','s31'

class Gen:
    def __init__(s,diag=False,dump=False,conv_first=False):
        s.A=Asm(); s.diag=diag; s.dump=dump; s.nst=0; s.nl=0; s.conv_first=conv_first; s.stn=[]
    def stamp(s,name):
        if not s.diag: return
        s.A(f's_memrealtime s[78:79]\ns_waitcnt lgkmcnt(0)\ns_mov_b32 s{80+s.nst}, s78'); s.nst+=1; s.stn.append(name)
        assert s.nst<=20
    def lab(s,p): s.nl+=1; return f'L_{p}{s.nl}'
    def srd(s,dst,ptr,nbytes):
        d=int(dst[2:dst.index(':')]); p=40+2*ptr
        s.A(f's_mov_b32 s{d}, s{p}\ns_mov_b32 s{d+1}, s{p+1}\ns_mov_b32 s{d+2}, {nbytes}\ns_mov_b32 s{d+3}, 0x20000')
    def poll(s,vaddr,soff,vtmp):
        A=s.A; l=s.lab('poll'); e=s.lab('polld')
        A('s_mov_b32 s33, 0'); A.label(l)
        A(f'''buffer_load_dword {vtmp}, {vaddr}, {sWS}, {soff} offen sc1
        s_add_u32 s33, s33, 1
        s_waitcnt vmcnt(0)
        v_cmp_ne_u32 vcc, {NONCE}, {vtmp}
        s_cmp_gt_u32 s33, {SPIN}
        s_cbranch_scc1 {e}
        s_cbranch_vccnz {l}''')
        A.label(e)
    def publish(s,soff_expr):
        A=s.A; l=s.lab('pub')
        A('s_waitcnt vmcnt(0) lgkmcnt(0)\ns_barrier')
        A(f's_cmp_lg_u32 {WV}, 0\ns_cbranch_scc1 {l}')
        A(soff_expr)
        A(f'''v_mov_b32 v18, {NONCE}
        s_mov_b64 exec, 1
        buffer_store_dword v18, v5, {sWS}, s34 offen sc1
        s_mov_b64 exec, -1''')
        A.label(l)
        A.vm-=1
    def get_nonce(s):
        A=s.A; l=s.lab('nn'); e=s.lab('nnd')
        A('s_mov_b32 s33, 0'); A.label(l)
        A(f'''global_load_dword v18, v5, {P(pDBG)} sc1
        s_add_u32 s33, s33, 1
        s_waitcnt vmcnt(0)
        v_readfirstlane_b32 {NONCE}, v18
        s_cmp_gt_u32 s33, {SPIN}
        s_cbranch_scc1 {e}
        s_cmp_eq_u32 {NONCE}, 0
        s_cbranch_scc1 {l}''')
        A.label(e)

    def entry(s):
        A=s.A
        A.raw(f'; @launch grid=(256,1,1) block=(256,1,1) lds={LDS_BYTES}')
        A.raw(f'.amdgcn_target "amdgcn-amd-amdhsa--gfx950"\n.text\n.globl {NAME}\n.p2align 8\n.type {NAME},@function\n{NAME}:')
        A('''s_cmp_ge_u32 s2, 256
        s_cbranch_scc1 L_end
        s_load_dwordx16 s[40:55], s[0:1], 0
        s_load_dwordx16 s[56:71], s[0:1], 64''')
        if s.diag: A('s_memrealtime s[76:77]')
        A(f'''v_lshrrev_b32 v6, 6, v0
        v_and_b32 v1, 63, v0
        v_readfirstlane_b32 {WV}, v6
        v_and_b32 v2, 15, v0
        v_bfe_u32 v3, v0, 4, 2
        v_lshlrev_b32 v4, 4, v1
        v_mov_b32 v5, 0
        s_cmp_lt_u32 s2, 32
        s_cbranch_scc1 L_aux''')

    def aux(s):
        A=s.A; A.label('L_aux')
        A('s_memrealtime s[72:73]\ns_getpc_b64 s[74:75]')
        A.label('L_pc')
        A(f'''s_sub_u32 s74, s74, L_pc-{NAME}
        s_subb_u32 s75, s75, 0
        v_lshlrev_b32 v6, 7, v0
        s_waitcnt lgkmcnt(0)''')
        s.srd(sX,pX,2048*896); s.srd(sWI,pWO,896*896); s.srd(sWS,pWS,0x2000000)
        A(f'''s_lshl_b32 s32, s2, 2
        s_add_u32 s32, s32, {WV}
        s_cmp_lg_u32 s32, 0
        s_cbranch_scc1 L_aux1
        s_or_b32 {NONCE}, s72, 1
        v_mov_b32 v18, {NONCE}
        global_store_dword v5, v18, {P(pDBG)} sc1''')
        A.label('L_aux1')
        A(f'''v_cmp_gt_u32 vcc, L_codeend-{NAME}, v6
        s_and_saveexec_b64 s[36:37], vcc
        global_load_dword v7, v6, s[74:75]
        s_mov_b64 exec, s[36:37]
        v_add_u32 v6, 0x8000, v6
        v_cmp_gt_u32 vcc, L_codeend-{NAME}, v6
        s_and_saveexec_b64 s[36:37], vcc
        s_cbranch_execz L_aux2
        global_load_dword v7, v6, s[74:75]''')
        A.label('L_aux2')
        A('s_mov_b64 exec, s[36:37]')
        A(f's_mul_i32 s34, s2, 57344\ns_mul_i32 s35, {WV}, 14336\ns_add_u32 s34, s34, s35')
        for j in range(14):
            if j%4==0: A(f's_add_u32 m0, s35, {j*1024}\ns_add_u32 s36, s34, {j*1024}')
            A(f'buffer_load_dwordx4 v4, {sX}, s36 offen offset:{(j%4)*1024} lds')
        A(f's_mul_i32 s34, s2, 28672\ns_mul_i32 s35, {WV}, 7168\ns_add_u32 s34, s34, s35\ns_add_u32 s35, s35, 57344')
        for j in range(7):
            if j%4==0: A(f's_add_u32 m0, s35, {j*1024}\ns_add_u32 s36, s34, {j*1024}')
            A(f'buffer_load_dwordx4 v4, {sWI}, s36 offen offset:{(j%4)*1024} lds')
        A('v_mul_u32_u24 v8, 224, v3')
        for c in range(14): A(f'global_load_dwordx4 v[{64+4*c}:{67+4*c}], v8, {P(pGW)} offset:{16*c}')
        A(f'''v_lshrrev_b32 v9, 2, v2
        v_and_b32 v10, 3, v2
        v_lshl_add_u32 v11, v3, 3, v9
        v_mul_u32_u24 v11, 896, v11
        v_lshl_add_u32 v11, v10, 3, v11
        s_mul_i32 s34, {WV}, 224
        v_add_u32 v11, s34, v11
        v_lshl_add_u32 v12, v3, 2, v9
        v_mul_u32_u24 v12, 896, v12
        v_lshl_add_u32 v12, v10, 3, v12
        s_add_u32 s35, s34, 57344
        v_add_u32 v12, s35, v12
        v_lshlrev_b32 v13, 12, v2
        v_lshl_add_u32 v13, v3, 4, v13
        s_waitcnt vmcnt(0)
        s_barrier''')
        A(f's_mul_i32 s34, {WV}, {7*16*4096}\ns_lshl_b32 s35, s2, 7\ns_add_u32 s34, s34, s35\ns_add_u32 s34, s34, {WS_UT}')
        for dt in range(7):
            for lh in range(2):
                r=20+8*(dt%2)+4*lh
                A(f'ds_read_b64_tr_b16 v[{r}:{r+1}], v11 offset:{32*dt+lh*32*896}')
                A(f'ds_read_b64_tr_b16 v[{r+2}:{r+3}], v11 offset:{32*dt+lh*32*896+4*896}')
            A('s_waitcnt lgkmcnt(0)')
            for lh in range(2):
                r=20+8*(dt%2)+4*lh
                A(f'buffer_store_dwordx4 v[{r}:{r+3}], v13, {sWS}, s34 offen offset:{64*lh} sc1')
            A(f's_add_u32 s34, s34, {16*4096}')
        A(f'''s_cmp_ge_u32 s2, 28
        s_cbranch_scc1 L_aux3
        s_mul_i32 s34, {WV}, {7*28*1024}
        s_lshl_b32 s35, s2, 10
        s_add_u32 s34, s34, s35
        s_add_u32 s34, s34, {WS_WT}''')
        for dt in range(7):
            r=36+4*(dt%2)
            A(f'ds_read_b64_tr_b16 v[{r}:{r+1}], v12 offset:{32*dt}\nds_read_b64_tr_b16 v[{r+2}:{r+3}], v12 offset:{32*dt+16*896}')
            A(f's_waitcnt lgkmcnt(0)\nbuffer_store_dwordx4 v[{r}:{r+3}], v4, {sWS}, s34 offen sc1\ns_add_u32 s34, s34, {28*1024}')
        A.label('L_aux3')
        A(f'''s_lshl_b32 s34, {WV}, 4
        v_add_u32 v14, s34, v2
        v_mul_u32_u24 v14, 896, v14
        v_add_u32 v14, v14, v8
        v_mov_b32 v15, 0
        v_mov_b32 v16, 0''')
        for c in range(14): A(f'ds_read_b128 v[{128+4*c}:{131+4*c}], v14 offset:{16*c}')
        A('s_waitcnt lgkmcnt(0)')
        for c in range(56):
            A(f'''v_lshlrev_b32 v44, 16, v{128+c}
            v_and_b32 v45, 0xffff0000, v{128+c}
            v_lshlrev_b32 v46, 16, v{64+c}
            v_and_b32 v47, 0xffff0000, v{64+c}
            v_mul_f32 v44, v44, v46
            v_mul_f32 v45, v45, v47
            v_cvt_pk_bf16_f32 v44, v44, v45
            v_lshlrev_b32 v46, 16, v44
            v_and_b32 v47, 0xffff0000, v44
            v_add_f32 v15, v15, v46
            v_add_f32 v16, v16, v47''') if c<4 else None
        for c in range(4,56):
            A(f'''v_lshlrev_b32 v44, 16, v{128+c}
            v_and_b32 v45, 0xffff0000, v{128+c}
            v_lshlrev_b32 v46, 16, v{64+c}
            v_and_b32 v47, 0xffff0000, v{64+c}
            v_pk_mul_f32 v[44:45], v[44:45], v[46:47]
            v_cvt_pk_bf16_f32 v44, v44, v45
            v_lshlrev_b32 v46, 16, v44
            v_and_b32 v47, 0xffff0000, v44
            v_add_f32 v15, v15, v46
            v_add_f32 v16, v16, v47''')
        A(f'''v_add_f32 v15, v15, v16
        v_mov_b32 v16, v15
        v_permlane32_swap_b32 v15, v16
        v_add_f32 v15, v15, v16
        v_mov_b32 v16, v15
        v_permlane16_swap_b32 v15, v16
        v_add_f32 v15, v15, v16
        v_cvt_pk_bf16_f32 v15, v15, v15
        v_and_b32 v15, 0xffff0000, v15
        v_mul_f32 v15, {f2u(-LOG2E)}, v15
        v_exp_f32 v15, v15
        v_add_f32 v15, 1.0, v15
        v_rcp_f32 v15, v15
        v_cvt_pk_bf16_f32 v15, v15, v15
        v_and_b32 v15, 0xffff0000, v15
        s_lshl_b32 s34, s2, 8
        s_lshl_b32 s35, {WV}, 6
        s_add_u32 s34, s34, s35
        s_add_u32 s34, s34, {WS_GATE}
        v_lshlrev_b32 v16, 2, v2
        s_mov_b64 exec, 0xffff
        buffer_store_dword v15, v16, {sWS}, s34 offen sc1
        s_mov_b64 exec, -1''')
        s.get_nonce()
        s.publish(f's_lshl_b32 s34, s2, 7\ns_add_u32 s34, s34, {WS_XF}')
        A('s_endpgm')

    def dma_x(s,kc):
        A=s.A
        A(f's_add_u32 m0, s72, {kc*8192}\ns_add_u32 s34, s73, {kc*128}')
        A(f'buffer_load_dwordx4 v30, {sX}, s34 offen lds')
        return A(f'buffer_load_dwordx4 v31, {sX}, s34 offen offset:1024 lds')
    def dma_w(s,q):
        A=s.A; kc=q%7; col='s75' if q<7 else 's35'
        A(f's_add_u32 m0, s74, {(q%6)*16384}\ns_add_u32 s34, {col}, {kc*64*3584}')
        for i in range(4): tk=A(f'buffer_load_dwordx4 v{32+i}, {sWI}, s34 offen offset:{1024*i} lds')
        return tk
    def prologue(s):
        A=s.A
        A(f'''s_sub_u32 s32, s2, 32
        s_and_b32 s33, s32, 7
        s_lshr_b32 s32, s32, 3
        s_lshr_b32 s34, s33, 1
        s_and_b32 s33, s33, 1
        s_lshl_b32 s34, s34, 3
        s_lshl_b32 s33, s33, 2
        s_and_b32 s35, s32, 7
        s_lshr_b32 s36, s32, 3
        s_add_u32 s36, s36, s33
        s_add_u32 s37, s35, s33
        s_cmp_lt_u32 s32, 24
        s_cselect_b32 s35, s35, s37
        s_cselect_b32 {CB}, s36, 3
        s_add_u32 {RB}, s34, s35''')
        A(f'''v_lshrrev_b32 v6, 3, v1
        v_and_b32 v7, 7, v1
        v_bfe_u32 v8, v1, 4, 1
        s_and_b32 s32, {WV}, 1
        s_lshl_b32 s32, s32, 2
        v_or_b32 v8, s32, v8
        v_xor_b32 v7, v7, v8
        s_lshl_b32 s33, {WV}, 4
        v_add_u32 v6, s33, v6
        v_mul_u32_u24 v6, 896, v6
        v_lshl_add_u32 v30, v7, 4, v6
        v_xor_b32 v7, 2, v7
        v_lshl_add_u32 v31, v7, 4, v6
        v_add_u32 v31, {8*896-1024}, v31
        v_add_u32 v6, s33, v3
        v_mul_u32_u24 v6, 3584, v6
        v_lshlrev_b32 v7, 1, v3
        v_xor_b32 v7, v7, v2
        v_lshl_add_u32 v32, v7, 4, v6
        v_add_u32 v33, {4*3584-1024}, v32
        v_xor_b32 v7, 8, v7
        v_lshl_add_u32 v34, v7, 4, v6
        v_add_u32 v34, {8*3584-2048}, v34
        v_add_u32 v35, {4*3584-1024}, v34
        s_lshl_b32 s72, {WV}, 11
        s_mul_i32 s73, {RB}, 57344
        s_lshl_b32 s74, {WV}, 12
        s_add_u32 s74, s74, {WR}
        s_lshl_b32 s35, {CB}, 8
        s_add_u32 s75, s35, 1792
        s_waitcnt lgkmcnt(0)''')
        s.srd(sX,pX,2048*896); s.srd(sWI,pWI,448*3584)
        if s.diag: A('s_mov_b32 s80, s76'); s.nst=1; s.stn.append('start')
        s.tkx=[None]*7; s.tkw=[None]*14
        for q in range(6):
            s.tkx[q]=s.dma_x(q); s.tkw[q]=s.dma_w(q)
        s.tkx[6]=s.dma_x(6)
        s.srd(sSP,pWSP,2048*4096); s.srd(sWS,pWS,0x2000000); s.srd(sO,pOUT,2048*896)
        A(f'''s_lshl_b32 s36, {CB}, 5
        s_add_u32 s36, s36, {RB}
        s_lshl_b32 s37, s36, 2
        s_load_dword s38, {P(pLDT)}, s37
        s_load_dword s39, {P(pDSK)}, s37
        s_lshl_b32 s36, s36, 10
        s_lshl_b32 s37, {WV}, 8
        s_add_u32 s36, s36, s37
        v_lshl_add_u32 v6, v1, 2, s36
        global_load_dword v36, v6, {P(pLA)}
        global_load_dword v37, v6, {P(pAI)}
        global_load_dword v38, v6, {P(pCR)}''')
        s.tkpar=A(f'global_load_dword v39, v6, {P(pCI)}')
        A(f'''v_lshrrev_b32 v6, 2, v2
        v_and_b32 v7, 3, v2
        v_lshl_add_u32 v19, v6, 3, v7
        s_lshr_b32 s32, {WV}, 1
        s_and_b32 s33, {WV}, 1
        s_lshl_b32 s36, {RB}, 6
        s_lshl_b32 s37, s32, 5
        s_add_u32 s36, s36, s37
        s_lshl_b32 s37, s33, 2
        s_add_u32 s36, s36, s37
        v_add_lshl_u32 v6, v19, s36, 1''')
        s.tkb=A(f'global_load_ushort v17, v6, {P(pBSP)}')
        A(f'''v_lshrrev_b32 v6, 1, v2
        v_xor_b32 v6, v6, v3
        v_lshlrev_b32 v6, 4, v6
        v_lshl_add_u32 v20, v19, 7, v6
        s_lshl_b32 s36, s32, 12
        v_add_u32 v20, s36, v20
        v_xor_b32 v21, 64, v20
        v_lshrrev_b32 v6, 2, v2
        v_lshl_add_u32 v7, v3, 3, v6
        v_lshlrev_b32 v7, 8, v7
        v_and_b32 v8, 3, v2
        v_lshl_add_u32 v7, v8, 3, v7
        v_add_u32 v7, {WR}, v7
        v_and_b32 v8, 1, v3
        v_xor_b32 v8, s33, v8
        v_lshl_or_b32 v6, v8, 2, v6''')
        for ft in range(4):
            A(f'v_xor_b32 v8, {ft}, v6\nv_lshl_add_u32 v{22+ft}, v8, 5, v7\nv_add_u32 v{26+ft}, 49152, v{22+ft}')
        for v in range(11):
            r=6+v
            A(f'''v_lshlrev_b32 v150, 3, v0
            v_sub_u32 v150, {2047-v}, v150
            v_max_i32 v151, 0, v150
            v_cvt_f32_i32 v151, v151
            v_cvt_pk_bf16_f32 v151, v151, v5
            v_subrev_u32 v151, 0x4280, v151
            v_max_i32 v150, -1, v150
            v_min_i32 v150, 127, v150
            v_max_i32 v150, v150, v151
            v_lshlrev_b32 v150, 2, v150
            v_add_u32 v{r}, {KC+16}, v150''')
        A(f'''s_waitcnt lgkmcnt(0)
        s_lshl_b32 s36, s32, 4
        s_lshr_b32 s38, s38, s36
        s_lshl_b32 s38, s38, 16
        s_lshr_b32 s39, s39, s36
        s_lshl_b32 s39, s39, 16''')

    def g1_reads(s,q,sub,b):
        A=s.A; B=104+24*b; kc=q%7; slot=q%6
        for T in range(2): A(f'ds_read_b128 v[{B+4*T}:{B+4*T+3}], v{20+sub} offset:{kc*8192+T*512}')
        for ft in range(4):
            a=(22 if slot<3 else 26)+ft; o=(slot%3)*16384+sub*8192; r=B+8+4*ft
            A(f'ds_read_b64_tr_b16 v[{r}:{r+1}], v{a} offset:{o}')
            tk=A(f'ds_read_b64_tr_b16 v[{r+2}:{r+3}], v{a} offset:{o+1024}')
        return tk
    def g1_mfma(s,q,sub,b):
        A=s.A; B=104+24*b; z1=q>=7; acc=72 if z1 else 40; first=(q%7==0 and sub==0)
        for ft in range(4):
            for T in range(2):
                d=f'v[{acc+16*T+4*ft}:{acc+16*T+4*ft+3}]'; x=f'v[{B+4*T}:{B+4*T+3}]'; w=f'v[{B+8+4*ft}:{B+11+4*ft}]'
                a,bb=(w,x) if z1 else (x,w)
                A(f'v_mfma_f32_16x16x32_bf16 {d}, {a}, {bb}, {"0" if first else d}')
    def gemm1_half(s,q0,after_dma=None):
        A=s.A
        for q in range(q0,q0+7):
            tk1=s.g1_reads(q,1,1)
            A.wait(s.tk0); s.g1_mfma(q,0,0)
            if q<13:
                A.wait(s.tkw[q+1], s.tkx[q+1] if q+1<7 else None, tk1); A('s_barrier')
                if q+6<14: s.tkw[q+6]=s.dma_w(q+6)
                if q+6==13 and after_dma: after_dma()
                s.tk0=s.g1_reads(q+1,0,0)
            else: A.wait(tk1)
            s.g1_mfma(q,1,1)
    def gelu(s,base,tmp):
        A=s.A
        for g0 in range(0,32,8):
            pr=[(base+g0+2*j,tmp+2*j) for j in range(4)]
            for z,t in pr: A(f'v_pk_mul_f32 v[{t}:{t+1}], v[{z}:{z+1}], v[{z}:{z+1}]')
            for z,t in pr: A(f'v_pk_fma_f32 v[{t}:{t+1}], v[{t}:{t+1}], v[254:255], v[254:255] op_sel:[0,1,0] op_sel_hi:[1,1,0]')
            for z,t in pr: A(f'v_pk_mul_f32 v[{t}:{t+1}], v[{t}:{t+1}], v[{z}:{z+1}]')
            for z,t in pr: A(f'v_exp_f32 v{t}, v{t}\nv_exp_f32 v{t+1}, v{t+1}')
            for z,t in pr: A(f'v_pk_add_f32 v[{t}:{t+1}], v[{t}:{t+1}], 1.0 op_sel_hi:[1,0]')
            for z,t in pr: A(f'v_rcp_f32 v{t}, v{t}\nv_rcp_f32 v{t+1}, v{t+1}')
            for z,t in pr: A(f'v_pk_mul_f32 v[{z}:{z+1}], v[{z}:{z+1}], v[{t}:{t+1}]')
    def a_loads(s,n0,n1):
        A=s.A
        for n in range(n0,n1):
            tau,kk=divmod(n,16)
            if kk==0 or n==n0:
                A(f'''s_xor_b32 s36, {WV}, {tau}
                s_lshr_b32 s37, s36, 1
                s_and_b32 s36, s36, 1
                s_lshl_b32 s37, s37, 17
                s_lshl_b32 s36, s36, 14
                s_add_u32 s36, s36, s37
                s_lshl_b32 s37, {RB}, 18
                s_add_u32 s36, s36, s37
                s_lshl_b32 s37, {WV}, 10
                s_add_u32 s36, s36, s37''')
            s.tka=A(f'buffer_load_dwordx4 a[{4*n}:{4*n+3}], v253, {sSP}, s36 offen offset:{64*kk}')
    def phase1(s):
        A=s.A
        A(f'''v_mov_b32 v254, {f2u(K0)}
        v_mov_b32 v255, {f2u(K1)}
        v_lshlrev_b32 v253, 12, v19
        v_lshl_add_u32 v253, v3, 4, v253''')
        A.wait(s.tkw[0],s.tkx[0]); A('s_barrier'); s.stamp('first')
        s.tk0=s.g1_reads(0,0,0)
        s.gemm1_half(0); s.stamp('g1z2')
        tkn=A(f'global_load_dword v18, v5, {P(pDBG)} sc1')
        s.gelu(40,152)
        for T in range(2):
            for h in range(2):
                z=lambda ft:f'v[{40+16*T+4*ft+2*h}:{41+16*T+4*ft+2*h}]'
                S=f'v[{152+4*T+2*h}:{153+4*T+2*h}]'; Q=f'v[{160+4*T+2*h}:{161+4*T+2*h}]'
                A(f'''v_pk_add_f32 {S}, {z(0)}, {z(1)}
                v_pk_mul_f32 {Q}, {z(0)}, {z(0)}
                v_pk_add_f32 {S}, {S}, {z(2)}
                v_pk_fma_f32 {Q}, {z(1)}, {z(1)}, {Q}
                v_pk_add_f32 {S}, {S}, {z(3)}
                v_pk_fma_f32 {Q}, {z(2)}, {z(2)}, {Q}
                v_pk_fma_f32 {Q}, {z(3)}, {z(3)}, {Q}''')
        for X in (152,160):
            for j in range(4): A(f'v_add_f32_dpp v{X+j}, v{X+j}, v{X+j} row_shl:8 row_mask:0xf bank_mask:0x3')
        for X in (152,160):
            for j in range(4): A(f'v_add_f32_dpp v{X+j}, v{X+j+4}, v{X+j+4} row_shr:8 row_mask:0xf bank_mask:0xc')
        for X in (152,160):
            for j in range(2): A(f'v_add_f32_dpp v{X+j}, v{X+j}, v{X+j} row_shl:4 row_mask:0xf bank_mask:0x5')
        for X in (152,160):
            for j in range(2): A(f'v_add_f32_dpp v{X+j}, v{X+j+2}, v{X+j+2} row_shr:4 row_mask:0xf bank_mask:0xa')
        for qp in ('[1,0,3,2]','[2,3,0,1]'):
            for r in (152,153,160,161): A(f'v_add_f32_dpp v{r}, v{r}, v{r} quad_perm:{qp} row_mask:0xf bank_mask:0xf')
        A.wait(tkn); l=s.lab('n'); A(f'v_readfirstlane_b32 {NONCE}, v18\ns_cmp_lg_u32 {NONCE}, 0\ns_cbranch_scc1 {l}')
        vm,vd=A.vm,A.vmd; s.get_nonce(); A.vm,A.vmd=vm,vd; A.label(l)
        A(f'''v_mov_b32 v168, v152
        v_mov_b32 v169, v160
        s_mov_b32 exec_lo, 0xaaaaaaaa
        s_mov_b32 exec_hi, 0xaaaaaaaa
        v_mov_b32 v168, v153
        v_mov_b32 v169, v161
        s_mov_b64 exec, -1
        v_mov_b32 v170, {NONCE}
        v_mov_b32 v171, {NONCE}
        v_lshrrev_b32 v172, 2, v2
        v_and_b32 v173, 1, v2
        v_lshl_add_u32 v172, v172, 1, v173
        v_lshl_add_u32 v172, v3, 3, v172
        v_lshlrev_b32 v172, 4, v172
        s_mul_i32 s36, {RB}, 14336
        s_lshr_b32 s32, {WV}, 1
        s_lshl_b32 s37, s32, 9
        s_add_u32 s36, s36, s37
        s_add_u32 s76, s36, {WS_STAT}
        s_and_b32 s33, {WV}, 1
        s_lshl_b32 s37, {CB}, 1
        s_add_u32 s37, s37, s33
        s_lshl_b32 s37, s37, 10
        s_add_u32 s36, s76, s37
        s_mov_b32 exec_lo, 0x33333333
        s_mov_b32 exec_hi, 0x33333333
        buffer_store_dwordx4 v[168:171], v172, {sWS}, s36 offen sc1
        s_mov_b64 exec, -1''')
        s.stamp('stats_pub')
        s.gemm1_half(7,after_dma=lambda:s.a_loads(0,24)); s.stamp('g1z1')
        s.gelu(72,152)
        A(f'''s_lshr_b32 s32, {WV}, 1
        s_and_b32 s33, {WV}, 1
        s_lshl_b32 s36, s33, 13
        s_lshl_b32 s37, s32, 10
        s_add_u32 s36, s36, s37
        v_lshl_add_u32 v160, v1, 3, s36''')
        for T in range(2):
            for ft in range(4):
                z=72+16*T+4*ft; t=152+2*((4*T+ft)%4)
                A(f'v_cvt_pk_bf16_f32 v{t}, v{z}, v{z+1}\nv_cvt_pk_bf16_f32 v{t+1}, v{z+2}, v{z+3}\nds_write_b64 v160, v[{t}:{t+1}] offset:{Z1+ft*2048+T*512}')
        s.stamp('gelu1')
        A(f'''v_and_b32 v160, 7, v2
        v_lshl_add_u32 v160, v3, 3, v160
        v_lshrrev_b32 v161, 3, v2
        v_lshl_add_u32 v160, v161, 6, v160
        v_lshlrev_b32 v160, 4, v160
        s_add_u32 s35, s76, 4096
        s_add_u32 s36, s76, 8192
        s_add_u32 s37, s76, 12288
        s_mov_b32 s33, 0''')
        l=s.lab('st'); e=s.lab('std'); A.label(l)
        for c in range(7): A(f'buffer_load_dwordx4 v[{168+4*c}:{171+4*c}], v160, {sWS}, {["s76","s35","s36","s37"][c//2]} offen offset:{2048*(c%2)} sc1')
        A(f's_add_u32 s33, s33, 1\ns_waitcnt vmcnt(0)')
        for c in range(7): A(f'v_xor_b32 v{170+4*c}, {NONCE}, v{170+4*c}')
        A(f'''v_or3_b32 v161, v170, v174, v178
        v_or3_b32 v161, v161, v182, v186
        v_or3_b32 v161, v161, v190, v194
        v_cmp_ne_u32 vcc, 0, v161
        s_cmp_gt_u32 s33, {SPIN}
        s_cbranch_scc1 {e}
        s_cbranch_vccnz {l}''')
        A.label(e); s.stamp('stats_seen')
        A(f'''v_pk_add_f32 v[168:169], v[168:169], v[172:173]
        v_pk_add_f32 v[176:177], v[176:177], v[180:181]
        v_pk_add_f32 v[184:185], v[184:185], v[188:189]
        v_pk_add_f32 v[168:169], v[168:169], v[192:193]
        v_pk_add_f32 v[176:177], v[176:177], v[184:185]
        v_pk_add_f32 v[168:169], v[168:169], v[176:177]
        v_add_f32_dpp v168, v168, v168 row_ror:8 row_mask:0xf bank_mask:0xf
        v_add_f32_dpp v169, v169, v169 row_ror:8 row_mask:0xf bank_mask:0xf
        v_mul_f32 v168, {f2u(1/896)}, v168
        v_mul_f32 v169, {f2u(1/896)}, v169
        v_fma_f32 v169, -v168, v168, v169
        v_max_f32 v169, 0, v169
        v_add_f32 v169, {f2u(1e-5)}, v169
        v_rsq_f32 v169, v169
        v_mul_f32 v168, -1.0, v168
        v_mul_f32 v168, v168, v169''')
        for j in range(8): A(f'v_mov_b32_dpp v{152+j}, v169 row_newbcast:{j} row_mask:0xf bank_mask:0xf')
        for j in range(8): A(f'v_mov_b32_dpp v{172+j}, v168 row_newbcast:{j} row_mask:0xf bank_mask:0xf')
        A(f'''s_lshr_b32 s32, {WV}, 1
        s_and_b32 s33, {WV}, 1
        s_lshl_b32 s36, {CB}, 3
        s_lshl_b32 s37, s33, 2
        s_add_u32 s36, s36, s37
        s_lshl_b32 s36, s36, 6
        s_lshl_b32 s37, {RB}, 1
        s_add_u32 s36, s36, s37
        s_add_u32 s36, s36, s32
        s_lshl_b32 s36, s36, 10''')
        for ft in range(4):
            o=180+4*ft
            for T in range(2):
                for h in range(2):
                    z=40+16*T+4*ft+2*h; j=4*T+2*h
                    A(f'v_pk_fma_f32 v[{z}:{z+1}], v[{z}:{z+1}], v[{152+j}:{153+j}], v[{172+j}:{173+j}]')
            for T in range(2):
                for h in range(2):
                    z=40+16*T+4*ft+2*h
                    A(f'v_cvt_pk_bf16_f32 v{o+2*T+h}, v{z}, v{z+1}')
            A(f'buffer_store_dwordx4 v[{o}:{o+3}], v4, {sWS}, s36 offen sc1')
            if ft<3: A('s_add_u32 s36, s36, 0x10000')
        s.publish(f's_lshl_b32 s34, {CB}, 5\ns_add_u32 s34, s34, {RB}\ns_lshl_b32 s34, s34, 7\ns_add_u32 s34, s34, {WS_ZF}')
        s.stamp('z2n_pub')
        s.a_loads(24,64)

    def cmul(s,d,x,w):
        s.A(f'v_pk_mul_f32 v[{d}:{d+1}], v[{x}:{x+1}], v[{w}:{w+1}] op_sel_hi:[1,0]') if d!=x else None
    def kgen(s):
        A=s.A
        def cm(pairs):
            for k,(d,x,w) in enumerate(pairs): A(f'v_pk_mul_f32 v[{200+2*k}:{201+2*k}], v[{x}:{x+1}], v[{w}:{w+1}] op_sel_hi:[1,0]')
            for k,(d,x,w) in enumerate(pairs): A(f'v_pk_fma_f32 v[{d}:{d+1}], v[{x}:{x+1}], v[{w}:{w+1}], v[{200+2*k}:{201+2*k}] op_sel:[1,1,0] op_sel_hi:[0,1,1] neg_lo:[1,0,0]')
        wr=[0]
        def put(row,r):
            t=216+2*(wr[0]%4); wr[0]+=1
            A(f'v_cvt_pk_bf16_f32 v{t}, v{r}, v{r+1}\nv_cvt_pk_bf16_f32 v{t+1}, v{r+64}, v{r+65}\nds_write_b64 v230, v[{t}:{t+1}] offset:{row*544}')
        both=lambda L:[(d+o,x+o,w+o) for d,x,w in L for o in (0,64)]
        W1,W16,W256,X,Y,AN=40,42,44,46,48,50
        PE=lambda e:52+2*(e-1)
        A(f'''s_mul_i32 s36, {WV}, {TBW}
        s_add_u32 s36, s36, {TB}
        v_lshl_add_u32 v230, v1, 3, s36
        v_mul_u32_u24 v231, 544, v2
        v_lshl_add_u32 v231, v3, 4, v231
        v_add_u32 v231, s36, v231
        v_mov_b32 v232, s38
        v_mul_f32 v232, {f2u(LOG2E)}, v232
        v_exp_f32 v232, v232
        v_cvt_pk_bf16_f32 v232, v232, v232
        v_and_b32 v232, 0xffff0000, v232''')
        A.wait(s.tkpar)
        for o,un in ((0,lambda d,r:f'v_lshlrev_b32 v{d}, 16, v{r}'),(64,lambda d,r:f'v_and_b32 v{d}, 0xffff0000, v{r}')):
            A(f'''{un(70+o,36)}
            {un(71+o,37)}
            {un(X+o,38)}
            {un(X+1+o,39)}
            v_mul_f32 v{70+o}, {f2u(LOG2E)}, v{70+o}
            v_exp_f32 v{70+o}, v{70+o}
            v_add_f32 v{72+o}, v232, v232
            v_cvt_pk_bf16_f32 v{70+o}, v{70+o}, v{70+o}
            v_mul_f32 v{X+o}, v{X+o}, v{72+o}
            v_and_b32 v{70+o}, 0xffff0000, v{70+o}
            v_mul_f32 v{X+1+o}, v{X+1+o}, v{72+o}
            v_mul_f32 v{70+o}, v{70+o}, v232
            v_mul_f32 v{71+o}, v{71+o}, v232
            v_mul_f32 v{70+o}, {f2u(-LOG2E)}, v{70+o}
            v_mul_f32 v{71+o}, 0.15915494, v{71+o}''')
            for W,p,sg in ((W1,1.0,-1),(W16,16.0,1),(W256,256.0,-1)):
                A(f'''v_mul_f32 v{72+o}, {f2u(p)}, v{70+o}
                v_mul_f32 v{73+o}, {f2u(p*sg)}, v{71+o}
                v_exp_f32 v{72+o}, v{72+o}
                v_fract_f32 v{73+o}, v{73+o}
                v_cos_f32 v{W+o}, v{73+o}
                v_sin_f32 v{W+1+o}, v{73+o}
                v_mul_f32 v{W+o}, v{W+o}, v{72+o}
                v_mul_f32 v{W+1+o}, v{W+1+o}, v{72+o}''')
        A(f'v_mov_b32 v216, 0x00003f80\nv_mov_b32 v217, 0x00003f80\nds_write_b64 v230, v[216:217] offset:{16*544}'); wr[0]=1
        put(0,X); put(17,W1); put(32,W256)
        prev=W1
        for i in range(1,16):
            L=[(X,X,W16)]
            c=i+1
            if c<16:
                d=PE(c//2) if c%2==0 else Y
                L.append((d,prev,W1))
            cm(both(L)); put(i,X)
            if c<16: put(16+c,d); prev=d
        for e in range(1,8,2):
            L=[(Y,W256,PE(e))]+([(74,W256,PE(e+1))] if e<7 else [])
            cm(both(L)); put(32+e,Y)
            if e<7: put(33+e,74)
        cm(both([(AN,W256,W256)])); put(40,AN)
        for b in range(2,8):
            if b<4:
                row=40+4*(b-2)
                cm(both([(Y,AN,PE(2)),(74,AN,PE(4))])); put(row+1,Y); put(row+2,74)
                cm(both([(Y,AN,PE(6)),(AN,AN,W256)])); put(row+3,Y)
            else:
                cm(both([(Y,AN,PE(4)),(AN,AN,W256)])); put(48+2*(b-4)+1,Y)
            put(44 if b==2 else 48+2*(b-3),AN)
        s.stamp('ktab')
        A('s_waitcnt lgkmcnt(0)')
        tks=[]
        for ks in range(8):
            b=64+16*(ks%4)
            if ks>=4:
                A.wait(tks[ks-4])
                for t in range(3): A(f'v_mfma_f32_16x16x32_bf16 v[{40+4*t}:{43+4*t}], v[{b+4+4*t}:{b+7+4*t}], v[{b}:{b+3}], {"0" if ks==4 else f"v[{40+4*t}:{43+4*t}]"}')
            if ks==3: A.wait(tks[0])
            for t in range(4): tk=A(f'ds_read_b128 v[{b+4*t}:{b+4*t+3}], v231 offset:{t*16*544+64*ks}')
            tks.append(tk)
        for ks in range(4,8):
            b=64+16*(ks%4); A.wait(tks[ks])
            for t in range(3): A(f'v_mfma_f32_16x16x32_bf16 v[{40+4*t}:{43+4*t}], v[{b+4+4*t}:{b+7+4*t}], v[{b}:{b+3}], v[{40+4*t}:{43+4*t}]')
        A(f'''s_mul_i32 s36, {WV}, 2816
        s_add_u32 s36, s36, {KC+16}
        v_lshlrev_b32 v200, 6, v2
        v_lshl_add_u32 v200, v3, 4, v200
        v_add_u32 v200, s36, v200
        v_lshlrev_b32 v201, 5, v2
        v_lshl_add_u32 v201, v3, 4, v201
        v_add_u32 v201, {4*256}, v201
        v_lshlrev_b32 v202, 4, v2
        v_lshl_add_u32 v202, v3, 8, v202
        v_add_u32 v202, {4*(384-128)}, v202
        s_mov_b32 exec_lo, 0x0
        s_mov_b32 exec_hi, 0xffffffff
        v_mov_b32 v201, v202
        s_mov_b64 exec, -1
        v_add_u32 v201, s36, v201
        v_lshlrev_b32 v202, 3, v2
        v_lshl_add_u32 v202, v3, 8, v202
        v_add_u32 v202, s36, v202
        v_mov_b32 v203, s36
        ds_write_b128 v200, v[40:43]
        ds_write_b128 v201, v[44:47]
        s_mov_b32 exec_lo, 0xffffffff
        s_mov_b32 exec_hi, 0xffff
        ds_write_b64 v202, v[48:49] offset:{4*512}
        s_mov_b32 exec_lo, 0xffffffff
        s_mov_b32 exec_hi, 0x0
        ds_write_b64 v202, v[50:51] offset:{4*544}
        s_mov_b64 exec, 1
        v_add_u32 v203, -4, v203
        ds_write_b32 v203, v5
        s_mov_b64 exec, -1
        s_waitcnt lgkmcnt(0)
        s_barrier''')
        if s.dump:
            A(f's_lshl_b32 s36, {CB}, 5\ns_add_u32 s36, s36, {RB}\ns_mul_i32 s36, s36, 11264\ns_add_u32 s36, s36, 0x1000000\nv_lshlrev_b32 v200, 4, v0\nv_add_u32 v201, {KC}, v200')
            for j in range(3):
                A(f'ds_read_b128 v[40:43], v201 offset:{4096*j}\ns_waitcnt lgkmcnt(0)')
                if j==2: A('v_cmp_gt_u32 vcc, 192, v0\ns_and_saveexec_b64 s[34:35], vcc')
                A(f'buffer_store_dwordx4 v[40:43], v200, {sWS}, s36 offen\ns_add_u32 s36, s36, 4096\ns_waitcnt vmcnt(0)')
            A('s_mov_b64 exec, -1')
        A(f'v_lshlrev_b32 v200, 4, v0\nv_add_u32 v200, {RC}, v200')
        for d in range(2):
            b=40+24*d
            for v in range(11): tk=A(f'ds_read2st64_b32 v[{b+2*v}:{b+2*v+1}], v{6+v} offset0:{22*d} offset1:{22*d+11}')
            A.wait(tk)
            for v in range(11): A(f'v_add_f32 v{b+2*v}, v{b+2*v}, v{b+2*v+1}')
            for q in range(4):
                o=96+16*d+4*q
                for t in range(4): A(f'v_cvt_pk_bf16_f32 v{o+t}, v{b+2*(3-q+2*t)}, v{b+2*(4-q+2*t)}')
                A(f'ds_write_b128 v200, v[{o}:{o+3}] offset:{(4*d+q)*4160}')
        A(f'''v_mov_b32 v204, 0
        v_mov_b32 v205, 0
        v_mov_b32 v206, 0
        v_mov_b32 v207, 0
        v_lshrrev_b32 v201, 1, v2
        v_mul_u32_u24 v201, 4160, v201
        v_and_b32 v202, 1, v2
        v_lshl_add_u32 v201, v202, 4, v201
        ds_write_b128 v201, v[204:207] offset:{RC+4096}
        v_lshrrev_b32 v201, 5, v1
        v_mul_u32_u24 v201, 4608, v201
        v_and_b32 v202, 31, v1
        v_lshl_add_u32 v201, v202, 4, v201
        ds_write_b128 v201, v[204:207] offset:{UT}''')
        s.stamp('kexp')

    def load_ut(s):
        A=s.A
        A(f'v_and_b32 v200, 31, v1\nv_lshlrev_b32 v200, 7, v200\ns_mov_b32 s35, {WS_XF}')
        s.poll('v200','s35','v201')
        A(f'''s_lshl_b32 s36, {CB}, 5
        s_add_u32 s36, s36, {RB}
        s_lshl_b32 s36, s36, 13
        s_lshl_b32 s37, {WV}, 11
        s_add_u32 s36, s36, s37
        s_add_u32 s36, s36, {WS_UT}
        s_lshr_b32 s32, {WV}, 1
        s_lshl_b32 s32, s32, 9
        s_add_u32 s37, s37, s32
        s_add_u32 m0, s37, {UT+512}''')
        A(f'buffer_load_dwordx4 v4, {sWS}, s36 offen sc1 lds')
        s.tkut=A(f'buffer_load_dwordx4 v4, {sWS}, s36 offen offset:1024 sc1 lds')

    def red_addr(s):
        s.A(f'''s_mul_i32 s36, {WV}, 3072
        s_add_u32 s36, s36, {RED}
        v_add_u32 v20, s36, v4''')
        for tau in range(1,4):
            s.A(f's_xor_b32 s36, {WV}, {tau}\ns_mul_i32 s36, s36, 3072\ns_add_u32 s36, s36, {RED+(tau-1)*1024}\nv_add_u32 v{20+tau}, s36, v4')
    def gemm2(s):
        A=s.A; RING=128; ACC=(64,80)
        s.red_addr()
        A(f'''s_lshl_b32 s36, {WV}, 9
        v_lshl_add_u32 v24, v1, 3, s36
        v_lshlrev_b32 v17, 16, v17
        v_and_b32 v200, 7, v1
        v_lshlrev_b32 v200, 7, v200
        s_lshl_b32 s35, {CB}, 5
        s_lshl_b32 s36, {WV}, 3
        s_add_u32 s35, s35, s36
        s_lshl_b32 s35, s35, 7
        s_add_u32 s35, s35, {WS_ZF}
        s_lshl_b32 s72, {CB}, 9
        s_lshl_b32 s36, {WV}, 4
        s_add_u32 s72, s72, s36
        s_lshl_b32 s72, s72, 10
        s_lshl_b32 s73, {RB}, 2
        s_add_u32 s73, s73, {WV}
        s_mul_i32 s73, s73, 28
        s_lshl_b32 s36, {CB}, 2
        s_add_u32 s73, s73, s36
        s_lshl_b32 s73, s73, 10
        s_add_u32 s73, s73, {WS_H}
        s_mul_i32 s75, {WV}, 7
        s_mul_i32 s36, {CB}, 112
        s_add_u32 s75, s75, s36
        s_lshl_b32 s75, s75, 10
        s_add_u32 s75, s75, {WS_WT}''')
        s.poll('v200','s35','v201'); s.stamp('z2n_seen')
        tk={}
        def ld(j,kk):
            n=(j&1)*16+kk; r=RING+4*n
            if j<8:
                if kk%4==0: A(f's_add_u32 s34, s72, {j*65536+kk*1024}')
                tk[(j,kk)]=A(f'buffer_load_dwordx4 v[{r}:{r+3}], v4, {sWS}, s34 offen offset:{(kk%4)*1024} sc1')
        for j in range(2):
            for kk in range(16): ld(j,kk)
        def epi(j,step):
            a=ACC[j&1]; ro=(j&1)*12288
            if step==0:
                for tau in range(1,4): A(f'ds_write_b128 v{20+tau}, v[{a+4*tau}:{a+4*tau+3}] offset:{ro}')
            if step==1: A('s_waitcnt lgkmcnt(0)\ns_barrier')
            if step==2:
                for u in range(3): A(f'ds_read_b128 v[{96+4*u}:{99+4*u}], v20 offset:{ro+1024*u}')
                s.tke=A(f'ds_read_b64 v[108:109], v24 offset:{Z1+j*2048}')
            if step==3:
                A.wait(s.tke)
                for r in range(4): A(f'v_add_f32 v{96+r}, v{96+r}, v{100+r}')
                for r in range(4): A(f'v_add_f32 v{104+r}, v{104+r}, v{a+r}')
            if step==4:
                for r in range(4): A(f'v_add_f32 v{96+r}, v{96+r}, v17')
                for r in range(4): A(f'v_add_f32 v{96+r}, v{96+r}, v{104+r}')
            if step==5:
                A('''v_cvt_pk_bf16_f32 v100, v96, v97
                v_cvt_pk_bf16_f32 v101, v98, v99
                v_lshlrev_b32 v104, 16, v108
                v_and_b32 v105, 0xffff0000, v108
                v_lshlrev_b32 v106, 16, v109
                v_and_b32 v107, 0xffff0000, v109''')
            if step==6:
                A('''v_lshlrev_b32 v96, 16, v100
                v_and_b32 v97, 0xffff0000, v100
                v_lshlrev_b32 v98, 16, v101
                v_and_b32 v99, 0xffff0000, v101''')
                for r in range(4): A(f'v_mul_f32 v{96+r}, v{96+r}, v{104+r}')
            if step==7:
                h=112+2*(j&1)
                A(f'v_cvt_pk_bf16_f32 v{h}, v96, v97\nv_cvt_pk_bf16_f32 v{h+1}, v98, v99')
                if j&1: A(f'buffer_store_dwordx4 v[112:115], v4, {sWS}, s73 offen offset:{(j>>1)*1024} sc1')
        sched={1:0,4:1,5:2,8:3,9:4,10:5,11:6,12:7}
        A.wait(s.tka)
        for j in range(8):
            a=ACC[j&1]
            for kk in range(16):
                r=RING+4*((j&1)*16+kk)
                A.wait(tk[(j,kk)])
                for tau in range(4):
                    d=f'v[{a+4*tau}:{a+4*tau+3}]'; n=tau*16+kk
                    A(f'v_mfma_f32_16x16x32_bf16 {d}, v[{r}:{r+3}], a[{4*n}:{4*n+3}], {"0" if kk==0 else d}')
                ld(j+2,kk)
                if j>0 and kk in sched: epi(j-1,sched[kk])
        s.stamp('g2loop')
        for st in range(8): epi(7,st)
        s.publish(f's_lshl_b32 s34, {RB}, 3\ns_add_u32 s34, s34, {CB}\ns_lshl_b32 s34, s34, 7\ns_add_u32 s34, s34, {WS_HF}')
        s.stamp('h_pub')
        for n in range(28):
            tau,k7=divmod(n,7); r=RING+4*n
            if k7==0: A(f's_xor_b32 s36, {WV}, {tau}\ns_mul_i32 s36, s36, {28*1024}\ns_add_u32 s74, s75, s36')
            if k7==4: A('s_add_u32 s74, s74, 4096')
            s.tkwt=A(f'buffer_load_dwordx4 v[{r}:{r+3}], v4, {sWS}, s74 offen offset:{(k7%4)*1024} sc1')

    def conv(s):
        A=s.A; F='v' if s.conv_first else 'a'
        A(f'''s_lshr_b32 s32, {WV}, 1
        s_mul_i32 s36, s32, {4*4160}
        s_add_u32 s36, s36, {RC+4056-3584-448}
        v_and_b32 v26, 3, v2
        v_mul_u32_u24 v26, 4160, v26
        v_lshrrev_b32 v27, 2, v2
        v_lshlrev_b32 v27, 3, v27
        v_sub_u32 v26, v26, v27
        v_lshl_add_u32 v26, v3, 4, v26
        v_add_u32 v26, s36, v26
        s_mul_i32 s36, s32, 4608
        s_add_u32 s36, s36, {UT+480-448}
        v_lshlrev_b32 v27, 5, v2
        v_lshl_add_u32 v28, v3, 3, v27
        v_lshl_add_u32 v27, v3, 4, v27
        v_add_u32 v27, s36, v27
        s_add_u32 s36, s36, {512-32}
        v_add_u32 v29, s36, v28
        s_lshl_b32 s36, {CB}, 5
        s_add_u32 s36, s36, {RB}
        s_lshl_b32 s36, s36, 1
        s_add_u32 s36, s36, s32
        s_lshl_b32 s36, s36, 12
        s_add_u32 s77, s36, {WS_AT}''')
        A.wait(s.tkut); A('s_waitcnt lgkmcnt(0)\ns_barrier')
        lo=s.lab('cvo'); le=s.lab('cve')
        A(f's_and_b32 s33, {WV}, 1\ns_cmp_lg_u32 s33, 0\ns_cbranch_scc1 {lo}')
        vm0=A.vm; vd0=A.vmd
        for var,cs in enumerate(((0,3,4,7),(1,2,5,6))):
            A.vm=vm0; A.vmd=vd0
            if var: A.label(lo)
            nm=cs[-1]+1
            base=lambda rho:128+64*(rho&1)
            def reads(rho):
                out=[]; b=base(rho)
                for m in range(nm):
                    out.append(f'ds_read_b128 {F}[{b+32+4*m}:{b+35+4*m}], v27 offset:{512*m+64*(7-rho)}')
                    o=512*(7-m)+64*(7-rho)
                    out.append(f'ds_read_b64 {F}[{b+4*m}:{b+4*m+1}], v26 offset:{o}')
                    out.append(f'ds_read_b64 {F}[{b+4*m+2}:{b+4*m+3}], v26 offset:{o+8}')
                return out
            for t in reads(0):
                tk=A(t)
                if A.lg%12==0: A('s_waitcnt lgkmcnt(8)')
            for rho in range(8):
                b=base(rho); A('s_waitcnt lgkmcnt(0)')
                nxt=reads(rho+1) if rho<7 else []
                mf=[(ci,c,mu) for mu in range(nm) for ci,c in enumerate(cs) if mu<=c]
                seen=set()
                for k,(ci,c,mu) in enumerate(mf):
                    d=f'v[{40+4*ci}:{43+4*ci}]'; first=(rho==0 and ci not in seen); seen.add(ci)
                    A(f'v_mfma_f32_16x16x32_bf16 {d}, {F}[{b+4*mu}:{b+4*mu+3}], {F}[{b+32+4*(c-mu)}:{b+35+4*(c-mu)}], {"0" if first else d}')
                    n=2 if k<len(nxt)//2+1 else 0
                    for t in nxt[2*k:2*k+2]: A(t)
                    if k==6 and nxt: A('s_waitcnt lgkmcnt(10)')
            for ci,c in enumerate(cs): A(f'ds_read_b64 v[{56+2*ci}:{57+2*ci}], v29 offset:{512*c}')
            A('s_waitcnt lgkmcnt(0)')
            for ci,c in enumerate(cs):
                y=40+4*ci; u=56+2*ci
                A(f'''v_lshlrev_b32 v64, 16, v{u}
                v_and_b32 v65, 0xffff0000, v{u}
                v_lshlrev_b32 v66, 16, v{u+1}
                v_and_b32 v67, 0xffff0000, v{u+1}
                v_fmac_f32 v{y}, s39, v64
                v_fmac_f32 v{y+1}, s39, v65
                v_fmac_f32 v{y+2}, s39, v66
                v_fmac_f32 v{y+3}, s39, v67
                v_cvt_pk_bf16_f32 v{u}, v{y}, v{y+1}
                v_cvt_pk_bf16_f32 v{u+1}, v{y+2}, v{y+3}
                buffer_store_dwordx2 v[{u}:{u+1}], v28, {sWS}, s77 offen offset:{512*c} sc1''')
            if var==0: A(f's_branch {le}')
        A.label(le)
        s.publish(f's_lshl_b32 s34, {CB}, 5\ns_add_u32 s34, s34, {RB}\ns_lshl_b32 s34, s34, 7\ns_add_u32 s34, s34, {WS_AF}')
        s.stamp('conv')

    def gemm3(s):
        A=s.A; RING=128; ACC=(64,80)
        A(f'''v_min_u32 v30, 6, v2
        v_lshlrev_b32 v30, 7, v30
        s_lshl_b32 s35, {RB}, 10
        s_add_u32 s35, s35, {WS_HF}
        s_mul_i32 s72, {RB}, 112
        s_mul_i32 s36, {WV}, 7
        s_add_u32 s72, s72, s36
        s_lshl_b32 s72, s72, 10
        s_add_u32 s72, s72, {WS_H}''')
        s.poll('v30','s35','v31'); s.stamp('h_seen')
        tk={}
        for T in range(4):
            for kk in range(7):
                n=T*7+kk
                if kk%4==0: A(f's_add_u32 s34, s72, {T*28*1024+kk*1024}')
                tk[n]=A(f'buffer_load_dwordx4 a[{4*n}:{4*n+3}], v4, {sWS}, s34 offen offset:{(kk%4)*1024} sc1')
        A(f'''s_lshl_b32 s36, {RB}, 8
        s_add_u32 s36, s36, {WS_GATE}
        v_lshlrev_b32 v31, 2, v19''')
        for T in range(4): tkg=A(f'buffer_load_dword v{32+T}, v31, {sWS}, s36 offen offset:{4*(32*(T>>1)+4*(T&1))} sc1')
        A(f'''v_and_b32 v36, 1, v2
        v_lshlrev_b32 v36, 4, v36
        v_lshlrev_b32 v36, v36, v255
        v_lshrrev_b32 v37, 2, v2
        v_cmp_eq_u32 vcc, v37, v3
        v_cndmask_b32 v36, 0, v36, vcc
        v_and_b32 v37, 2, v2
        v_cmp_eq_u32 vcc, 0, v37
        v_cndmask_b32 v37, v36, v5, vcc
        v_cndmask_b32 v36, v5, v36, vcc
        v_mov_b32 v40, 0
        v_mov_b32 v41, 0
        v_mov_b32 v44, 0
        v_mov_b32 v45, 0
        v_mul_u32_u24 v38, 896, v19
        v_lshl_add_u32 v38, v3, 3, v38
        s_mul_i32 s73, {RB}, 57344
        s_lshl_b32 s36, {CB}, 7
        s_add_u32 s73, s73, s36
        s_lshl_b32 s36, {WV}, 5
        s_add_u32 s73, s73, s36
        v_and_b32 v30, 31, v1
        v_lshlrev_b32 v30, 7, v30
        v_lshlrev_b32 v39, 12, v2
        v_lshl_add_u32 v39, v3, 4, v39
        s_lshl_b32 s75, {CB}, 2
        s_add_u32 s75, s75, {WV}
        s_lshl_b32 s75, s75, 16
        s_lshl_b32 s36, {RB}, 7
        s_add_u32 s75, s75, s36
        s_add_u32 s75, s75, {WS_AT}
        s_lshl_b32 s35, {CB}, 12
        s_add_u32 s35, s35, {WS_AF}''')
        def epi(T,step):
            a=ACC[T&1]; ro=(T&1)*12288
            if step==0:
                for tau in range(1,4): A(f'ds_write_b128 v{20+tau}, v[{a+4*tau}:{a+4*tau+3}] offset:{ro}')
            if step==1: A('s_waitcnt lgkmcnt(0)\ns_barrier')
            if step==2:
                for u in range(3): s.tke=A(f'ds_read_b128 v[{96+4*u}:{99+4*u}], v20 offset:{ro+1024*u}')
            if step==3:
                A.wait(s.tke)
                for r in range(4): A(f'v_add_f32 v{96+r}, v{96+r}, v{100+r}')
                for r in range(4): A(f'v_add_f32 v{104+r}, v{104+r}, v{a+r}')
            if step==4:
                A(f'v_sub_f32 v100, 1.0, v{32+T}')
                for r in range(4): A(f'v_add_f32 v{96+r}, v{96+r}, v{104+r}')
                for r in range(4): A(f'v_mul_f32 v{48+4*T+r}, v{96+r}, v100')
        sched={1:0,2:1,3:2,5:3,6:4}
        for T in range(4):
            a=ACC[T&1]
            for kk in range(7):
                n=T*7+kk; A.wait(tk[n])
                for tau in range(4):
                    d=f'v[{a+4*tau}:{a+4*tau+3}]'; r=RING+4*(tau*7+kk)
                    A(f'v_mfma_f32_16x16x32_bf16 {d}, v[{r}:{r+3}], a[{4*n}:{4*n+3}], {"0" if kk==0 else d}')
                if T>0 and kk in sched:
                    if T==1 and sched[kk]==4: A.wait(tkg)
                    epi(T-1,sched[kk])
        for st in range(5): epi(3,st)
        s.stamp('g3')
        s.poll('v30','s35','v31'); s.stamp('a_seen')
        for h in range(2): tk=A(f'buffer_load_dwordx4 v[{64+4*h}:{67+4*h}], v39, {sWS}, s75 offen offset:{64*h} sc1')
        A.wait(tk)
        for T in range(4):
            o=48+4*T; w=40+2*(1-(T&1))
            A(f'''v_cvt_pk_bf16_f32 v46, v{32+T}, v{32+T}
            v_and_b32 v42, v46, v36
            v_and_b32 v43, v46, v37
            v_mfma_f32_16x16x32_bf16 v[{o}:{o+3}], v[{64+4*(T>>1)}:{67+4*(T>>1)}], v[{w}:{w+3}], v[{o}:{o+3}]
            s_nop 3''')
        for T in range(4):
            o=48+4*T
            A(f'''v_cvt_pk_bf16_f32 v{o}, v{o}, v{o+1}
            v_cvt_pk_bf16_f32 v{o+1}, v{o+2}, v{o+3}
            s_add_u32 s34, s73, {896*(32*(T>>1)+4*(T&1))}
            buffer_store_dwordx2 v[{o}:{o+1}], v38, {sO}, s34 offen''')
        s.stamp('done')

    def build(s):
        A=s.A
        s.entry(); s.prologue(); s.phase1(); s.kgen(); s.load_ut()
        A('v_mov_b32 v255, 0xffff') if False else None
        if s.conv_first: s.conv()
        s.gemm2()
        if not s.conv_first: s.conv()
        A('v_mov_b32 v255, 0xffff')
        s.gemm3()
        if s.diag:
            A(f's_lshl_b32 s34, s2, 2\ns_add_u32 s34, s34, {WV}\ns_lshl_b32 s34, s34, 7\ns_add_u32 s34, s34, {WS_DBG}\ns_mov_b64 exec, 1')
            for i in range(s.nst): A(f'v_mov_b32 v6, s{80+i}\nbuffer_store_dword v6, v5, {sWS}, s34 offen offset:{4*i}')
        A.label('L_end'); A('s_endpgm')
        s.aux()
        A.label('L_codeend')
        A.raw(f'''.section .rodata,"a"
.p2align 6
.amdhsa_kernel {NAME}
  .amdhsa_next_free_vgpr 512
  .amdhsa_next_free_sgpr 102
  .amdhsa_accum_offset 256
  .amdhsa_group_segment_fixed_size 0
  .amdhsa_kernarg_size 128
  .amdhsa_user_sgpr_count 2
  .amdhsa_user_sgpr_kernarg_segment_ptr 1
  .amdhsa_system_sgpr_workgroup_id_x 1
.end_amdhsa_kernel''')
        return A.finish()

if __name__=='__main__':
    import argparse
    ap=argparse.ArgumentParser(); ap.add_argument('out'); ap.add_argument('--diag',action='store_true'); ap.add_argument('--dump',action='store_true'); ap.add_argument('--conv_first',action='store_true')
    a=ap.parse_args()
    g=Gen(a.diag,a.dump,a.conv_first); t=g.build(); open(a.out,'w').write(t)
    if a.diag: open(a.out+'.stamps','w').write(' '.join(g.stn))
    print('nops inserted',g.A.nops,'lines',t.count('\n'))
```

```python
import sys, struct
from asmlib import *
NAME='gated_mix__ssm_conv_s4d__mixer_gmlp__prompt_kernel'
def f2u(x): return '0x%08x'%struct.unpack('<I',struct.pack('<f',x))[0]

WS_Z2N=0; WS_H=0x400000; WS_UT=0x800000; WS_AT=0xA00000; WS_WT=0xC00000; WS_GATE=0xD00000
WS_STAT=0xD10000; WS_ZF=0xE00000; WS_HF=0xE08000; WS_AF=0xE10000; WS_XF=0xE18000; WS_DBG=0xF00000
XT=0; WR=57344; Z1=0; TB=16384; TBW=57*544; KC=TB+4*TBW; RC=16384; UT=RC+8*4160; RED=UT+2*4608
LDS_BYTES=155648
assert KC+4*2816<=LDS_BYTES and RED+24576<=LDS_BYTES
SPIN=200000
LOG2E=1.4426950408889634
K0=-2*0.7978845608028654*LOG2E; K1=K0*0.044715
P=lambda i:f's[{40+2*i}:{41+2*i}]'
pX,pLA,pAI,pCR,pCI,pLDT,pDSK,_,pWI,pWSP,pBSP,pWO,pGW,pOUT,pDBG,pWS=range(16)
sX,sWI,sSP,sWS,sO='s[8:11]','s[12:15]','s[16:19]','s[20:23]','s[24:27]'
RB,CB,WV,NONCE='s28','s29','s30','s31'

class Gen:
    def __init__(s,diag=False,dump=False,conv_first=False,spin=0):
        s.spin=spin
        s.A=Asm(); s.diag=diag; s.dump=dump; s.nst=0; s.nl=0; s.conv_first=conv_first; s.stn=[]
    def stamp(s,name):
        if not s.diag: return
        s.A(f's_memrealtime s[78:79]\ns_waitcnt lgkmcnt(0)\ns_mov_b32 s{80+s.nst}, s78'); s.nst+=1; s.stn.append(name)
        assert s.nst<=20
    def lab(s,p): s.nl+=1; return f'L_{p}{s.nl}'
    def srd(s,dst,ptr,nbytes):
        d=int(dst[2:dst.index(':')]); p=40+2*ptr
        s.A(f's_mov_b32 s{d}, s{p}\ns_mov_b32 s{d+1}, s{p+1}\ns_mov_b32 s{d+2}, {nbytes}\ns_mov_b32 s{d+3}, 0x20000')
    def poll(s,vaddr,soff,vtmp):
        A=s.A; l=s.lab('poll'); e=s.lab('polld')
        A('s_mov_b32 s33, 0'); A.label(l)
        A(f'''buffer_load_dword {vtmp}, {vaddr}, {sWS}, {soff} offen sc1
        s_add_u32 s33, s33, 1
        s_waitcnt vmcnt(0)
        v_cmp_ne_u32 vcc, {NONCE}, {vtmp}
        s_cmp_gt_u32 s33, {SPIN}
        s_cbranch_scc1 {e}
        s_cbranch_vccnz {l}''')
        A.label(e)
    def publish(s,soff_expr):
        A=s.A; l=s.lab('pub')
        A('s_waitcnt vmcnt(0) lgkmcnt(0)\ns_barrier')
        A(f's_cmp_lg_u32 {WV}, 0\ns_cbranch_scc1 {l}')
        A(soff_expr)
        A(f'''v_mov_b32 v18, {NONCE}
        s_mov_b64 exec, 1
        buffer_store_dword v18, v5, {sWS}, s34 offen sc1
        s_mov_b64 exec, -1''')
        A.label(l)
        A.vm-=1
    def get_nonce(s):
        A=s.A; l=s.lab('nn'); e=s.lab('nnd')
        A('s_mov_b32 s33, 0'); A.label(l)
        A(f'''global_load_dword v18, v5, {P(pDBG)} sc1
        s_add_u32 s33, s33, 1
        s_waitcnt vmcnt(0)
        v_readfirstlane_b32 {NONCE}, v18
        s_cmp_gt_u32 s33, {SPIN}
        s_cbranch_scc1 {e}
        s_cmp_eq_u32 {NONCE}, 0
        s_cbranch_scc1 {l}''')
        A.label(e)

    def entry(s):
        A=s.A
        A.raw(f'; @launch grid=(256,1,1) block=(256,1,1) lds={LDS_BYTES}')
        A.raw(f'.amdgcn_target "amdgcn-amd-amdhsa--gfx950"\n.text\n.globl {NAME}\n.p2align 8\n.type {NAME},@function\n{NAME}:')
        A('''s_cmp_ge_u32 s2, 256
        s_cbranch_scc1 L_end
        s_load_dwordx16 s[40:55], s[0:1], 0
        s_load_dwordx16 s[56:71], s[0:1], 64''')
        if s.diag: A('s_memrealtime s[76:77]')
        A(f'''v_lshrrev_b32 v6, 6, v0
        v_and_b32 v1, 63, v0
        v_readfirstlane_b32 {WV}, v6
        v_and_b32 v2, 15, v0
        v_bfe_u32 v3, v0, 4, 2
        v_lshlrev_b32 v4, 4, v1
        v_mov_b32 v5, 0
        s_cmp_lt_u32 s2, 32
        s_cbranch_scc1 L_aux''')

    def aux(s):
        A=s.A; A.label('L_aux')
        A('s_memrealtime s[72:73]\ns_getpc_b64 s[74:75]')
        A.label('L_pc')
        A(f'''s_sub_u32 s74, s74, L_pc-{NAME}
        s_subb_u32 s75, s75, 0
        v_lshlrev_b32 v6, 7, v0
        s_waitcnt lgkmcnt(0)''')
        s.srd(sX,pX,2048*896); s.srd(sWI,pWO,896*896); s.srd(sWS,pWS,0x2000000)
        A(f'''s_lshl_b32 s32, s2, 2
        s_add_u32 s32, s32, {WV}
        s_cmp_lg_u32 s32, 0
        s_cbranch_scc1 L_aux1
        s_or_b32 {NONCE}, s72, 1
        v_mov_b32 v18, {NONCE}
        global_store_dword v5, v18, {P(pDBG)} sc1''')
        A.label('L_aux1')
        A(f'''v_cmp_gt_u32 vcc, L_codeend-{NAME}, v6
        s_and_saveexec_b64 s[36:37], vcc
        global_load_dword v7, v6, s[74:75]
        s_mov_b64 exec, s[36:37]
        v_add_u32 v6, 0x8000, v6
        v_cmp_gt_u32 vcc, L_codeend-{NAME}, v6
        s_and_saveexec_b64 s[36:37], vcc
        s_cbranch_execz L_aux2
        global_load_dword v7, v6, s[74:75]''')
        A.label('L_aux2')
        A('s_mov_b64 exec, s[36:37]')
        A(f's_mul_i32 s34, s2, 57344\ns_mul_i32 s35, {WV}, 14336\ns_add_u32 s34, s34, s35')
        for j in range(14):
            if j%4==0: A(f's_add_u32 m0, s35, {j*1024}\ns_add_u32 s36, s34, {j*1024}')
            A(f'buffer_load_dwordx4 v4, {sX}, s36 offen offset:{(j%4)*1024} lds')
        A(f's_mul_i32 s34, s2, 28672\ns_mul_i32 s35, {WV}, 7168\ns_add_u32 s34, s34, s35\ns_add_u32 s35, s35, 57344')
        for j in range(7):
            if j%4==0: A(f's_add_u32 m0, s35, {j*1024}\ns_add_u32 s36, s34, {j*1024}')
            A(f'buffer_load_dwordx4 v4, {sWI}, s36 offen offset:{(j%4)*1024} lds')
        A('v_mul_u32_u24 v8, 224, v3')
        for c in range(14): A(f'global_load_dwordx4 v[{64+4*c}:{67+4*c}], v8, {P(pGW)} offset:{16*c}')
        A(f'''v_lshrrev_b32 v9, 2, v2
        v_and_b32 v10, 3, v2
        v_lshl_add_u32 v11, v3, 3, v9
        v_mul_u32_u24 v11, 896, v11
        v_lshl_add_u32 v11, v10, 3, v11
        s_mul_i32 s34, {WV}, 224
        v_add_u32 v11, s34, v11
        v_lshl_add_u32 v12, v3, 2, v9
        v_mul_u32_u24 v12, 896, v12
        v_lshl_add_u32 v12, v10, 3, v12
        s_add_u32 s35, s34, 57344
        v_add_u32 v12, s35, v12
        v_lshlrev_b32 v13, 12, v2
        v_lshl_add_u32 v13, v3, 4, v13
        s_waitcnt vmcnt(0)
        s_barrier''')
        A(f's_mul_i32 s34, {WV}, {7*16*4096}\ns_lshl_b32 s35, s2, 7\ns_add_u32 s34, s34, s35\ns_add_u32 s34, s34, {WS_UT}')
        for dt in range(7):
            for lh in range(2):
                r=20+8*(dt%2)+4*lh
                A(f'ds_read_b64_tr_b16 v[{r}:{r+1}], v11 offset:{32*dt+lh*32*896}')
                A(f'ds_read_b64_tr_b16 v[{r+2}:{r+3}], v11 offset:{32*dt+lh*32*896+4*896}')
            A('s_waitcnt lgkmcnt(0)')
            for lh in range(2):
                r=20+8*(dt%2)+4*lh
                A(f'buffer_store_dwordx4 v[{r}:{r+3}], v13, {sWS}, s34 offen offset:{64*lh} sc1')
            A(f's_add_u32 s34, s34, {16*4096}')
        A(f'''s_cmp_ge_u32 s2, 28
        s_cbranch_scc1 L_aux3
        s_mul_i32 s34, {WV}, {7*28*1024}
        s_lshl_b32 s35, s2, 10
        s_add_u32 s34, s34, s35
        s_add_u32 s34, s34, {WS_WT}''')
        for dt in range(7):
            r=36+4*(dt%2)
            A(f'ds_read_b64_tr_b16 v[{r}:{r+1}], v12 offset:{32*dt}\nds_read_b64_tr_b16 v[{r+2}:{r+3}], v12 offset:{32*dt+16*896}')
            A(f's_waitcnt lgkmcnt(0)\nbuffer_store_dwordx4 v[{r}:{r+3}], v4, {sWS}, s34 offen sc1\ns_add_u32 s34, s34, {28*1024}')
        A.label('L_aux3')
        A(f'''s_lshl_b32 s34, {WV}, 4
        v_add_u32 v14, s34, v2
        v_mul_u32_u24 v14, 896, v14
        v_add_u32 v14, v14, v8
        v_mov_b32 v15, 0
        v_mov_b32 v16, 0''')
        for c in range(14): A(f'ds_read_b128 v[{128+4*c}:{131+4*c}], v14 offset:{16*c}')
        A('s_waitcnt lgkmcnt(0)')
        for c in range(56):
            A(f'''v_lshlrev_b32 v44, 16, v{128+c}
            v_and_b32 v45, 0xffff0000, v{128+c}
            v_lshlrev_b32 v46, 16, v{64+c}
            v_and_b32 v47, 0xffff0000, v{64+c}
            v_mul_f32 v44, v44, v46
            v_mul_f32 v45, v45, v47
            v_cvt_pk_bf16_f32 v44, v44, v45
            v_lshlrev_b32 v46, 16, v44
            v_and_b32 v47, 0xffff0000, v44
            v_add_f32 v15, v15, v46
            v_add_f32 v16, v16, v47''') if c<4 else None
        for c in range(4,56):
            A(f'''v_lshlrev_b32 v44, 16, v{128+c}
            v_and_b32 v45, 0xffff0000, v{128+c}
            v_lshlrev_b32 v46, 16, v{64+c}
            v_and_b32 v47, 0xffff0000, v{64+c}
            v_pk_mul_f32 v[44:45], v[44:45], v[46:47]
            v_cvt_pk_bf16_f32 v44, v44, v45
            v_lshlrev_b32 v46, 16, v44
            v_and_b32 v47, 0xffff0000, v44
            v_add_f32 v15, v15, v46
            v_add_f32 v16, v16, v47''')
        A(f'''v_add_f32 v15, v15, v16
        v_mov_b32 v16, v15
        v_permlane32_swap_b32 v15, v16
        v_add_f32 v15, v15, v16
        v_mov_b32 v16, v15
        v_permlane16_swap_b32 v15, v16
        v_add_f32 v15, v15, v16
        v_cvt_pk_bf16_f32 v15, v15, v15
        v_and_b32 v15, 0xffff0000, v15
        v_mul_f32 v15, {f2u(-LOG2E)}, v15
        v_exp_f32 v15, v15
        v_add_f32 v15, 1.0, v15
        v_rcp_f32 v15, v15
        v_cvt_pk_bf16_f32 v15, v15, v15
        v_and_b32 v15, 0xffff0000, v15
        s_lshl_b32 s34, s2, 8
        s_lshl_b32 s35, {WV}, 6
        s_add_u32 s34, s34, s35
        s_add_u32 s34, s34, {WS_GATE}
        v_lshlrev_b32 v16, 2, v2
        s_mov_b64 exec, 0xffff
        buffer_store_dword v15, v16, {sWS}, s34 offen sc1
        s_mov_b64 exec, -1''')
        s.get_nonce()
        s.publish(f's_lshl_b32 s34, s2, 7\ns_add_u32 s34, s34, {WS_XF}')
        A('s_endpgm')

    def dma_x(s,kc):
        A=s.A
        A(f's_add_u32 m0, s72, {kc*8192}\ns_add_u32 s34, s73, {kc*128}')
        A(f'buffer_load_dwordx4 v30, {sX}, s34 offen lds')
        return A(f'buffer_load_dwordx4 v31, {sX}, s34 offen offset:1024 lds')
    def dma_w(s,q):
        A=s.A; kc=q%7; col='s75' if q<7 else 's35'
        A(f's_add_u32 m0, s74, {(q%6)*16384}\ns_add_u32 s34, {col}, {kc*64*3584}')
        for i in range(4): tk=A(f'buffer_load_dwordx4 v{32+i}, {sWI}, s34 offen offset:{1024*i} lds')
        return tk
    def prologue(s):
        A=s.A
        A(f'''s_sub_u32 s32, s2, 32
        s_and_b32 s33, s32, 7
        s_lshr_b32 s32, s32, 3
        s_lshr_b32 s34, s33, 1
        s_and_b32 s33, s33, 1
        s_lshl_b32 s34, s34, 3
        s_lshl_b32 s33, s33, 2
        s_and_b32 s35, s32, 7
        s_lshr_b32 s36, s32, 3
        s_add_u32 s36, s36, s33
        s_add_u32 s37, s35, s33
        s_cmp_lt_u32 s32, 24
        s_cselect_b32 s35, s35, s37
        s_cselect_b32 {CB}, s36, 3
        s_add_u32 {RB}, s34, s35''')
        A(f'''v_lshrrev_b32 v6, 3, v1
        v_and_b32 v7, 7, v1
        v_bfe_u32 v8, v1, 4, 1
        s_and_b32 s32, {WV}, 1
        s_lshl_b32 s32, s32, 2
        v_or_b32 v8, s32, v8
        v_xor_b32 v7, v7, v8
        s_lshl_b32 s33, {WV}, 4
        v_add_u32 v6, s33, v6
        v_mul_u32_u24 v6, 896, v6
        v_lshl_add_u32 v30, v7, 4, v6
        v_xor_b32 v7, 2, v7
        v_lshl_add_u32 v31, v7, 4, v6
        v_add_u32 v31, {8*896-1024}, v31
        v_add_u32 v6, s33, v3
        v_mul_u32_u24 v6, 3584, v6
        v_lshlrev_b32 v7, 1, v3
        v_xor_b32 v7, v7, v2
        v_lshl_add_u32 v32, v7, 4, v6
        v_add_u32 v33, {4*3584-1024}, v32
        v_xor_b32 v7, 8, v7
        v_lshl_add_u32 v34, v7, 4, v6
        v_add_u32 v34, {8*3584-2048}, v34
        v_add_u32 v35, {4*3584-1024}, v34
        s_lshl_b32 s72, {WV}, 11
        s_mul_i32 s73, {RB}, 57344
        s_lshl_b32 s74, {WV}, 12
        s_add_u32 s74, s74, {WR}
        s_lshl_b32 s35, {CB}, 8
        s_add_u32 s75, s35, 1792
        s_waitcnt lgkmcnt(0)''')
        s.srd(sX,pX,2048*896); s.srd(sWI,pWI,448*3584)
        if s.diag: A('s_mov_b32 s80, s76'); s.nst=1; s.stn.append('start')
        s.tkx=[None]*7; s.tkw=[None]*14
        for q in range(6):
            s.tkx[q]=s.dma_x(q); s.tkw[q]=s.dma_w(q)
        s.tkx[6]=s.dma_x(6)
        s.srd(sSP,pWSP,2048*4096); s.srd(sWS,pWS,0x2000000); s.srd(sO,pOUT,2048*896)
        A(f'''s_lshl_b32 s36, {CB}, 5
        s_add_u32 s36, s36, {RB}
        s_lshl_b32 s37, s36, 2
        s_load_dword s38, {P(pLDT)}, s37
        s_load_dword s39, {P(pDSK)}, s37
        s_lshl_b32 s36, s36, 10
        s_lshl_b32 s37, {WV}, 8
        s_add_u32 s36, s36, s37
        v_lshl_add_u32 v6, v1, 2, s36
        global_load_dword v36, v6, {P(pLA)}
        global_load_dword v37, v6, {P(pAI)}
        global_load_dword v38, v6, {P(pCR)}''')
        s.tkpar=A(f'global_load_dword v39, v6, {P(pCI)}')
        A(f'''v_lshrrev_b32 v6, 2, v2
        v_and_b32 v7, 3, v2
        v_lshl_add_u32 v19, v6, 3, v7
        s_lshr_b32 s32, {WV}, 1
        s_and_b32 s33, {WV}, 1
        s_lshl_b32 s36, {RB}, 6
        s_lshl_b32 s37, s32, 5
        s_add_u32 s36, s36, s37
        s_lshl_b32 s37, s33, 2
        s_add_u32 s36, s36, s37
        v_add_lshl_u32 v6, v19, s36, 1''')
        s.tkb=A(f'global_load_ushort v17, v6, {P(pBSP)}')
        A(f'''v_lshrrev_b32 v6, 1, v2
        v_xor_b32 v6, v6, v3
        v_lshlrev_b32 v6, 4, v6
        v_lshl_add_u32 v20, v19, 7, v6
        s_lshl_b32 s36, s32, 12
        v_add_u32 v20, s36, v20
        v_xor_b32 v21, 64, v20
        v_lshrrev_b32 v6, 2, v2
        v_lshl_add_u32 v7, v3, 3, v6
        v_lshlrev_b32 v7, 8, v7
        v_and_b32 v8, 3, v2
        v_lshl_add_u32 v7, v8, 3, v7
        v_add_u32 v7, {WR}, v7
        v_and_b32 v8, 1, v3
        v_xor_b32 v8, s33, v8
        v_lshl_or_b32 v6, v8, 2, v6''')
        for ft in range(4):
            A(f'v_xor_b32 v8, {ft}, v6\nv_lshl_add_u32 v{22+ft}, v8, 5, v7\nv_add_u32 v{26+ft}, 49152, v{22+ft}')
        for v in range(11):
            r=6+v
            A(f'''v_lshlrev_b32 v150, 3, v0
            v_sub_u32 v150, {2047-v}, v150
            v_max_i32 v151, 0, v150
            v_cvt_f32_i32 v151, v151
            v_cvt_pk_bf16_f32 v151, v151, v5
            v_subrev_u32 v151, 0x4280, v151
            v_max_i32 v150, -1, v150
            v_min_i32 v150, 127, v150
            v_max_i32 v150, v150, v151
            v_lshlrev_b32 v150, 2, v150
            v_add_u32 v{r}, {KC+16}, v150''')
        A(f'''s_waitcnt lgkmcnt(0)
        s_lshl_b32 s36, s32, 4
        s_lshr_b32 s38, s38, s36
        s_lshl_b32 s38, s38, 16
        s_lshr_b32 s39, s39, s36
        s_lshl_b32 s39, s39, 16''')

    def g1_reads(s,q,sub,b):
        A=s.A; B=104+24*b; kc=q%7; slot=q%6
        for T in range(2): A(f'ds_read_b128 v[{B+4*T}:{B+4*T+3}], v{20+sub} offset:{kc*8192+T*512}')
        for ft in range(4):
            a=(22 if slot<3 else 26)+ft; o=(slot%3)*16384+sub*8192; r=B+8+4*ft
            A(f'ds_read_b64_tr_b16 v[{r}:{r+1}], v{a} offset:{o}')
            tk=A(f'ds_read_b64_tr_b16 v[{r+2}:{r+3}], v{a} offset:{o+1024}')
        return tk
    def g1_mfma(s,q,sub,b):
        A=s.A; B=104+24*b; z1=q>=7; acc=72 if z1 else 40; first=(q%7==0 and sub==0)
        for ft in range(4):
            for T in range(2):
                d=f'v[{acc+16*T+4*ft}:{acc+16*T+4*ft+3}]'; x=f'v[{B+4*T}:{B+4*T+3}]'; w=f'v[{B+8+4*ft}:{B+11+4*ft}]'
                a,bb=(w,x) if z1 else (x,w)
                A(f'v_mfma_f32_16x16x32_bf16 {d}, {a}, {bb}, {"0" if first else d}')
    def gemm1_half(s,q0,after_dma=None):
        A=s.A
        for q in range(q0,q0+7):
            tk1=s.g1_reads(q,1,1)
            A.wait(s.tk0); s.g1_mfma(q,0,0)
            if q<13:
                A.wait(s.tkw[q+1], s.tkx[q+1] if q+1<7 else None, tk1); A('s_barrier')
                if q+6<14: s.tkw[q+6]=s.dma_w(q+6)
                if q+6==13 and after_dma: after_dma()
                s.tk0=s.g1_reads(q+1,0,0)
            else: A.wait(tk1)
            s.g1_mfma(q,1,1)
    def gelu(s,base,tmp):
        A=s.A
        for g0 in range(0,32,8):
            pr=[(base+g0+2*j,tmp+2*j) for j in range(4)]
            for z,t in pr: A(f'v_pk_mul_f32 v[{t}:{t+1}], v[{z}:{z+1}], v[{z}:{z+1}]')
            for z,t in pr: A(f'v_pk_fma_f32 v[{t}:{t+1}], v[{t}:{t+1}], v[254:255], v[254:255] op_sel:[0,1,0] op_sel_hi:[1,1,0]')
            for z,t in pr: A(f'v_pk_mul_f32 v[{t}:{t+1}], v[{t}:{t+1}], v[{z}:{z+1}]')
            for z,t in pr: A(f'v_exp_f32 v{t}, v{t}\nv_exp_f32 v{t+1}, v{t+1}')
            for z,t in pr: A(f'v_pk_add_f32 v[{t}:{t+1}], v[{t}:{t+1}], 1.0 op_sel_hi:[1,0]')
            for z,t in pr: A(f'v_rcp_f32 v{t}, v{t}\nv_rcp_f32 v{t+1}, v{t+1}')
            for z,t in pr: A(f'v_pk_mul_f32 v[{z}:{z+1}], v[{z}:{z+1}], v[{t}:{t+1}]')
    def a_loads(s,n0,n1):
        A=s.A
        for n in range(n0,n1):
            tau,kk=divmod(n,16)
            if kk==0 or n==n0:
                A(f'''s_xor_b32 s36, {WV}, {tau}
                s_lshr_b32 s37, s36, 1
                s_and_b32 s36, s36, 1
                s_lshl_b32 s37, s37, 17
                s_lshl_b32 s36, s36, 14
                s_add_u32 s36, s36, s37
                s_lshl_b32 s37, {RB}, 18
                s_add_u32 s36, s36, s37
                s_lshl_b32 s37, {WV}, 10
                s_add_u32 s36, s36, s37''')
            s.tka=A(f'buffer_load_dwordx4 a[{4*n}:{4*n+3}], v253, {sSP}, s36 offen offset:{64*kk}')
    def phase1(s):
        A=s.A
        A(f'''v_mov_b32 v254, {f2u(K0)}
        v_mov_b32 v255, {f2u(K1)}
        v_lshlrev_b32 v253, 12, v19
        v_lshl_add_u32 v253, v3, 4, v253''')
        A.wait(s.tkw[0],s.tkx[0]); A('s_barrier'); s.stamp('first')
        s.tk0=s.g1_reads(0,0,0)
        s.gemm1_half(0); s.stamp('g1z2')
        tkn=A(f'global_load_dword v18, v5, {P(pDBG)} sc1')
        s.gelu(40,152)
        for T in range(2):
            for h in range(2):
                z=lambda ft:f'v[{40+16*T+4*ft+2*h}:{41+16*T+4*ft+2*h}]'
                S=f'v[{152+4*T+2*h}:{153+4*T+2*h}]'; Q=f'v[{160+4*T+2*h}:{161+4*T+2*h}]'
                A(f'''v_pk_add_f32 {S}, {z(0)}, {z(1)}
                v_pk_mul_f32 {Q}, {z(0)}, {z(0)}
                v_pk_add_f32 {S}, {S}, {z(2)}
                v_pk_fma_f32 {Q}, {z(1)}, {z(1)}, {Q}
                v_pk_add_f32 {S}, {S}, {z(3)}
                v_pk_fma_f32 {Q}, {z(2)}, {z(2)}, {Q}
                v_pk_fma_f32 {Q}, {z(3)}, {z(3)}, {Q}''')
        for X in (152,160):
            for j in range(4): A(f'v_add_f32_dpp v{X+j}, v{X+j}, v{X+j} row_shl:8 row_mask:0xf bank_mask:0x3')
        for X in (152,160):
            for j in range(4): A(f'v_add_f32_dpp v{X+j}, v{X+j+4}, v{X+j+4} row_shr:8 row_mask:0xf bank_mask:0xc')
        for X in (152,160):
            for j in range(2): A(f'v_add_f32_dpp v{X+j}, v{X+j}, v{X+j} row_shl:4 row_mask:0xf bank_mask:0x5')
        for X in (152,160):
            for j in range(2): A(f'v_add_f32_dpp v{X+j}, v{X+j+2}, v{X+j+2} row_shr:4 row_mask:0xf bank_mask:0xa')
        for qp in ('[1,0,3,2]','[2,3,0,1]'):
            for r in (152,153,160,161): A(f'v_add_f32_dpp v{r}, v{r}, v{r} quad_perm:{qp} row_mask:0xf bank_mask:0xf')
        A.wait(tkn); l=s.lab('n'); A(f'v_readfirstlane_b32 {NONCE}, v18\ns_cmp_lg_u32 {NONCE}, 0\ns_cbranch_scc1 {l}')
        vm,vd=A.vm,A.vmd; s.get_nonce(); A.vm,A.vmd=vm,vd; A.label(l)
        A(f'''v_mov_b32 v168, v152
        v_mov_b32 v169, v160
        s_mov_b32 exec_lo, 0xaaaaaaaa
        s_mov_b32 exec_hi, 0xaaaaaaaa
        v_mov_b32 v168, v153
        v_mov_b32 v169, v161
        s_mov_b64 exec, -1
        v_mov_b32 v170, {NONCE}
        v_mov_b32 v171, {NONCE}
        v_lshrrev_b32 v172, 2, v2
        v_and_b32 v173, 1, v2
        v_lshl_add_u32 v172, v172, 1, v173
        v_lshl_add_u32 v172, v3, 3, v172
        v_lshlrev_b32 v172, 4, v172
        s_mul_i32 s36, {RB}, 14336
        s_lshr_b32 s32, {WV}, 1
        s_lshl_b32 s37, s32, 9
        s_add_u32 s36, s36, s37
        s_add_u32 s76, s36, {WS_STAT}
        s_and_b32 s33, {WV}, 1
        s_lshl_b32 s37, {CB}, 1
        s_add_u32 s37, s37, s33
        s_lshl_b32 s37, s37, 10
        s_add_u32 s36, s76, s37
        s_mov_b32 exec_lo, 0x33333333
        s_mov_b32 exec_hi, 0x33333333
        buffer_store_dwordx4 v[168:171], v172, {sWS}, s36 offen sc1
        s_mov_b64 exec, -1''')
        s.stamp('stats_pub')
        s.gemm1_half(7,after_dma=lambda:s.a_loads(0,24)); s.stamp('g1z1')
        s.gelu(72,152)
        A(f'''s_lshr_b32 s32, {WV}, 1
        s_and_b32 s33, {WV}, 1
        s_lshl_b32 s36, s33, 13
        s_lshl_b32 s37, s32, 10
        s_add_u32 s36, s36, s37
        v_lshl_add_u32 v160, v1, 3, s36''')
        for T in range(2):
            for ft in range(4):
                z=72+16*T+4*ft; t=152+2*((4*T+ft)%4)
                A(f'v_cvt_pk_bf16_f32 v{t}, v{z}, v{z+1}\nv_cvt_pk_bf16_f32 v{t+1}, v{z+2}, v{z+3}\nds_write_b64 v160, v[{t}:{t+1}] offset:{Z1+ft*2048+T*512}')
        s.stamp('gelu1')
        A(f'''v_and_b32 v160, 7, v2
        v_lshl_add_u32 v160, v3, 3, v160
        v_lshrrev_b32 v161, 3, v2
        v_lshl_add_u32 v160, v161, 6, v160
        v_lshlrev_b32 v160, 4, v160
        s_add_u32 s35, s76, 4096
        s_add_u32 s36, s76, 8192
        s_add_u32 s37, s76, 12288
        s_mov_b32 s33, 0''')
        l=s.lab('st'); e=s.lab('std'); A.label(l)
        for c in range(7): A(f'buffer_load_dwordx4 v[{168+4*c}:{171+4*c}], v160, {sWS}, {["s76","s35","s36","s37"][c//2]} offen offset:{2048*(c%2)} sc1')
        A(f's_add_u32 s33, s33, 1\ns_waitcnt vmcnt(0)')
        for c in range(7): A(f'v_xor_b32 v{170+4*c}, {NONCE}, v{170+4*c}')
        A(f'''v_or3_b32 v161, v170, v174, v178
        v_or3_b32 v161, v161, v182, v186
        v_or3_b32 v161, v161, v190, v194
        v_cmp_ne_u32 vcc, 0, v161
        s_cmp_gt_u32 s33, {SPIN}
        s_cbranch_scc1 {e}
        s_cbranch_vccnz {l}''')
        A.label(e); s.stamp('stats_seen')
        A(f'''v_pk_add_f32 v[168:169], v[168:169], v[172:173]
        v_pk_add_f32 v[176:177], v[176:177], v[180:181]
        v_pk_add_f32 v[184:185], v[184:185], v[188:189]
        v_pk_add_f32 v[168:169], v[168:169], v[192:193]
        v_pk_add_f32 v[176:177], v[176:177], v[184:185]
        v_pk_add_f32 v[168:169], v[168:169], v[176:177]
        v_add_f32_dpp v168, v168, v168 row_ror:8 row_mask:0xf bank_mask:0xf
        v_add_f32_dpp v169, v169, v169 row_ror:8 row_mask:0xf bank_mask:0xf
        v_mul_f32 v168, {f2u(1/896)}, v168
        v_mul_f32 v169, {f2u(1/896)}, v169
        v_fma_f32 v169, -v168, v168, v169
        v_max_f32 v169, 0, v169
        v_add_f32 v169, {f2u(1e-5)}, v169
        v_rsq_f32 v169, v169
        v_mul_f32 v168, -1.0, v168
        v_mul_f32 v168, v168, v169''')
        for j in range(8): A(f'v_mov_b32_dpp v{152+j}, v169 row_newbcast:{j} row_mask:0xf bank_mask:0xf')
        for j in range(8): A(f'v_mov_b32_dpp v{172+j}, v168 row_newbcast:{j} row_mask:0xf bank_mask:0xf')
        A(f'''s_lshr_b32 s32, {WV}, 1
        s_and_b32 s33, {WV}, 1
        s_lshl_b32 s36, {CB}, 3
        s_lshl_b32 s37, s33, 2
        s_add_u32 s36, s36, s37
        s_lshl_b32 s36, s36, 6
        s_lshl_b32 s37, {RB}, 1
        s_add_u32 s36, s36, s37
        s_add_u32 s36, s36, s32
        s_lshl_b32 s36, s36, 10''')
        for ft in range(4):
            o=180+4*ft
            for T in range(2):
                for h in range(2):
                    z=40+16*T+4*ft+2*h; j=4*T+2*h
                    A(f'v_pk_fma_f32 v[{z}:{z+1}], v[{z}:{z+1}], v[{152+j}:{153+j}], v[{172+j}:{173+j}]')
            for T in range(2):
                for h in range(2):
                    z=40+16*T+4*ft+2*h
                    A(f'v_cvt_pk_bf16_f32 v{o+2*T+h}, v{z}, v{z+1}')
            A(f'buffer_store_dwordx4 v[{o}:{o+3}], v4, {sWS}, s36 offen sc1')
            if ft<3: A('s_add_u32 s36, s36, 0x10000')
        s.publish(f's_lshl_b32 s34, {CB}, 5\ns_add_u32 s34, s34, {RB}\ns_lshl_b32 s34, s34, 7\ns_add_u32 s34, s34, {WS_ZF}')
        s.stamp('z2n_pub')
        s.a_loads(24,64)

    def cmul(s,d,x,w):
        s.A(f'v_pk_mul_f32 v[{d}:{d+1}], v[{x}:{x+1}], v[{w}:{w+1}] op_sel_hi:[1,0]') if d!=x else None
    def kgen(s):
        A=s.A
        def cm(pairs):
            for k,(d,x,w) in enumerate(pairs): A(f'v_pk_mul_f32 v[{200+2*k}:{201+2*k}], v[{x}:{x+1}], v[{w}:{w+1}] op_sel_hi:[1,0]')
            for k,(d,x,w) in enumerate(pairs): A(f'v_pk_fma_f32 v[{d}:{d+1}], v[{x}:{x+1}], v[{w}:{w+1}], v[{200+2*k}:{201+2*k}] op_sel:[1,1,0] op_sel_hi:[0,1,1] neg_lo:[1,0,0]')
        wr=[0]
        def put(row,r):
            t=216+2*(wr[0]%4); wr[0]+=1
            A(f'v_cvt_pk_bf16_f32 v{t}, v{r}, v{r+1}\nv_cvt_pk_bf16_f32 v{t+1}, v{r+64}, v{r+65}\nds_write_b64 v230, v[{t}:{t+1}] offset:{row*544}')
        both=lambda L:[(d+o,x+o,w+o) for d,x,w in L for o in (0,64)]
        W1,W16,W256,X,Y,AN=40,42,44,46,48,50
        PE=lambda e:52+2*(e-1)
        A(f'''s_mul_i32 s36, {WV}, {TBW}
        s_add_u32 s36, s36, {TB}
        v_lshl_add_u32 v230, v1, 3, s36
        v_mul_u32_u24 v231, 544, v2
        v_lshl_add_u32 v231, v3, 4, v231
        v_add_u32 v231, s36, v231
        v_mov_b32 v232, s38
        v_mul_f32 v232, {f2u(LOG2E)}, v232
        v_exp_f32 v232, v232
        v_cvt_pk_bf16_f32 v232, v232, v232
        v_and_b32 v232, 0xffff0000, v232''')
        A.wait(s.tkpar)
        for o,un in ((0,lambda d,r:f'v_lshlrev_b32 v{d}, 16, v{r}'),(64,lambda d,r:f'v_and_b32 v{d}, 0xffff0000, v{r}')):
            A(f'''{un(70+o,36)}
            {un(71+o,37)}
            {un(X+o,38)}
            {un(X+1+o,39)}
            v_mul_f32 v{70+o}, {f2u(LOG2E)}, v{70+o}
            v_exp_f32 v{70+o}, v{70+o}
            v_add_f32 v{72+o}, v232, v232
            v_cvt_pk_bf16_f32 v{70+o}, v{70+o}, v{70+o}
            v_mul_f32 v{X+o}, v{X+o}, v{72+o}
            v_and_b32 v{70+o}, 0xffff0000, v{70+o}
            v_mul_f32 v{X+1+o}, v{X+1+o}, v{72+o}
            v_mul_f32 v{70+o}, v{70+o}, v232
            v_mul_f32 v{71+o}, v{71+o}, v232
            v_mul_f32 v{70+o}, {f2u(-LOG2E)}, v{70+o}
            v_mul_f32 v{71+o}, 0.15915494, v{71+o}''')
            for W,p,sg in ((W1,1.0,-1),(W16,16.0,1),(W256,256.0,-1)):
                A(f'''v_mul_f32 v{72+o}, {f2u(p)}, v{70+o}
                v_mul_f32 v{73+o}, {f2u(p*sg)}, v{71+o}
                v_exp_f32 v{72+o}, v{72+o}
                v_fract_f32 v{73+o}, v{73+o}
                v_cos_f32 v{W+o}, v{73+o}
                v_sin_f32 v{W+1+o}, v{73+o}
                v_mul_f32 v{W+o}, v{W+o}, v{72+o}
                v_mul_f32 v{W+1+o}, v{W+1+o}, v{72+o}''')
        A(f'v_mov_b32 v216, 0x00003f80\nv_mov_b32 v217, 0x00003f80\nds_write_b64 v230, v[216:217] offset:{16*544}'); wr[0]=1
        put(0,X); put(17,W1); put(32,W256)
        prev=W1
        for i in range(1,16):
            L=[(X,X,W16)]
            c=i+1
            if c<16:
                d=PE(c//2) if c%2==0 else Y
                L.append((d,prev,W1))
            cm(both(L)); put(i,X)
            if c<16: put(16+c,d); prev=d
        for e in range(1,8,2):
            L=[(Y,W256,PE(e))]+([(74,W256,PE(e+1))] if e<7 else [])
            cm(both(L)); put(32+e,Y)
            if e<7: put(33+e,74)
        cm(both([(AN,W256,W256)])); put(40,AN)
        for b in range(2,8):
            if b<4:
                row=40+4*(b-2)
                cm(both([(Y,AN,PE(2)),(74,AN,PE(4))])); put(row+1,Y); put(row+2,74)
                cm(both([(Y,AN,PE(6)),(AN,AN,W256)])); put(row+3,Y)
            else:
                cm(both([(Y,AN,PE(4)),(AN,AN,W256)])); put(48+2*(b-4)+1,Y)
            put(44 if b==2 else 48+2*(b-3),AN)
        s.stamp('ktab')
        A('s_waitcnt lgkmcnt(0)')
        tks=[]
        for ks in range(8):
            b=64+16*(ks%4)
            if ks>=4:
                A.wait(tks[ks-4])
                for t in range(3): A(f'v_mfma_f32_16x16x32_bf16 v[{40+4*t}:{43+4*t}], v[{b+4+4*t}:{b+7+4*t}], v[{b}:{b+3}], {"0" if ks==4 else f"v[{40+4*t}:{43+4*t}]"}')
            if ks==3: A.wait(tks[0])
            for t in range(4): tk=A(f'ds_read_b128 v[{b+4*t}:{b+4*t+3}], v231 offset:{t*16*544+64*ks}')
            tks.append(tk)
        for ks in range(4,8):
            b=64+16*(ks%4); A.wait(tks[ks])
            for t in range(3): A(f'v_mfma_f32_16x16x32_bf16 v[{40+4*t}:{43+4*t}], v[{b+4+4*t}:{b+7+4*t}], v[{b}:{b+3}], v[{40+4*t}:{43+4*t}]')
        A(f'''s_mul_i32 s36, {WV}, 2816
        s_add_u32 s36, s36, {KC+16}
        v_lshlrev_b32 v200, 6, v2
        v_lshl_add_u32 v200, v3, 4, v200
        v_add_u32 v200, s36, v200
        v_lshlrev_b32 v201, 5, v2
        v_lshl_add_u32 v201, v3, 4, v201
        v_add_u32 v201, {4*256}, v201
        v_lshlrev_b32 v202, 4, v2
        v_lshl_add_u32 v202, v3, 8, v202
        v_add_u32 v202, {4*(384-128)}, v202
        s_mov_b32 exec_lo, 0x0
        s_mov_b32 exec_hi, 0xffffffff
        v_mov_b32 v201, v202
        s_mov_b64 exec, -1
        v_add_u32 v201, s36, v201
        v_lshlrev_b32 v202, 3, v2
        v_lshl_add_u32 v202, v3, 8, v202
        v_add_u32 v202, s36, v202
        v_mov_b32 v203, s36
        ds_write_b128 v200, v[40:43]
        ds_write_b128 v201, v[44:47]
        s_mov_b32 exec_lo, 0xffffffff
        s_mov_b32 exec_hi, 0xffff
        ds_write_b64 v202, v[48:49] offset:{4*512}
        s_mov_b32 exec_lo, 0xffffffff
        s_mov_b32 exec_hi, 0x0
        ds_write_b64 v202, v[50:51] offset:{4*544}
        s_mov_b64 exec, 1
        v_add_u32 v203, -4, v203
        ds_write_b32 v203, v5
        s_mov_b64 exec, -1
        s_waitcnt lgkmcnt(0)
        s_barrier''')
        if s.dump:
            A(f's_lshl_b32 s36, {CB}, 5\ns_add_u32 s36, s36, {RB}\ns_mul_i32 s36, s36, 11264\ns_add_u32 s36, s36, 0x1000000\nv_lshlrev_b32 v200, 4, v0\nv_add_u32 v201, {KC}, v200')
            for j in range(3):
                A(f'ds_read_b128 v[40:43], v201 offset:{4096*j}\ns_waitcnt lgkmcnt(0)')
                if j==2: A('v_cmp_gt_u32 vcc, 192, v0\ns_and_saveexec_b64 s[34:35], vcc')
                A(f'buffer_store_dwordx4 v[40:43], v200, {sWS}, s36 offen\ns_add_u32 s36, s36, 4096\ns_waitcnt vmcnt(0)')
            A('s_mov_b64 exec, -1')
        A(f'v_lshlrev_b32 v200, 4, v0\nv_add_u32 v200, {RC}, v200')
        for d in range(2):
            b=40+24*d
            for v in range(11): tk=A(f'ds_read2st64_b32 v[{b+2*v}:{b+2*v+1}], v{6+v} offset0:{22*d} offset1:{22*d+11}')
            A.wait(tk)
            for v in range(11): A(f'v_add_f32 v{b+2*v}, v{b+2*v}, v{b+2*v+1}')
            for q in range(4):
                o=96+16*d+4*q
                for t in range(4): A(f'v_cvt_pk_bf16_f32 v{o+t}, v{b+2*(3-q+2*t)}, v{b+2*(4-q+2*t)}')
                A(f'ds_write_b128 v200, v[{o}:{o+3}] offset:{(4*d+q)*4160}')
        A(f'''v_mov_b32 v204, 0
        v_mov_b32 v205, 0
        v_mov_b32 v206, 0
        v_mov_b32 v207, 0
        v_lshrrev_b32 v201, 1, v2
        v_mul_u32_u24 v201, 4160, v201
        v_and_b32 v202, 1, v2
        v_lshl_add_u32 v201, v202, 4, v201
        ds_write_b128 v201, v[204:207] offset:{RC+4096}
        v_lshrrev_b32 v201, 5, v1
        v_mul_u32_u24 v201, 4608, v201
        v_and_b32 v202, 31, v1
        v_lshl_add_u32 v201, v202, 4, v201
        ds_write_b128 v201, v[204:207] offset:{UT}''')
        s.stamp('kexp')

    def load_ut(s):
        A=s.A
        A(f'v_and_b32 v200, 31, v1\nv_lshlrev_b32 v200, 7, v200\ns_mov_b32 s35, {WS_XF}')
        s.poll('v200','s35','v201')
        A(f'''s_lshl_b32 s36, {CB}, 5
        s_add_u32 s36, s36, {RB}
        s_lshl_b32 s36, s36, 13
        s_lshl_b32 s37, {WV}, 11
        s_add_u32 s36, s36, s37
        s_add_u32 s36, s36, {WS_UT}
        s_lshr_b32 s32, {WV}, 1
        s_lshl_b32 s32, s32, 9
        s_add_u32 s37, s37, s32
        s_add_u32 m0, s37, {UT+512}''')
        A(f'buffer_load_dwordx4 v4, {sWS}, s36 offen sc1 lds')
        s.tkut=A(f'buffer_load_dwordx4 v4, {sWS}, s36 offen offset:1024 sc1 lds')

    def red_addr(s):
        s.A(f'''s_mul_i32 s36, {WV}, 3072
        s_add_u32 s36, s36, {RED}
        v_add_u32 v20, s36, v4''')
        for tau in range(1,4):
            s.A(f's_xor_b32 s36, {WV}, {tau}\ns_mul_i32 s36, s36, 3072\ns_add_u32 s36, s36, {RED+(tau-1)*1024}\nv_add_u32 v{20+tau}, s36, v4')
    def gemm2(s):
        A=s.A; RING=128; ACC=(64,80)
        s.red_addr()
        A(f'''s_lshl_b32 s36, {WV}, 9
        v_lshl_add_u32 v24, v1, 3, s36
        v_lshlrev_b32 v17, 16, v17
        v_and_b32 v200, 7, v1
        v_lshlrev_b32 v200, 7, v200
        s_lshl_b32 s35, {CB}, 5
        s_lshl_b32 s36, {WV}, 3
        s_add_u32 s35, s35, s36
        s_lshl_b32 s35, s35, 7
        s_add_u32 s35, s35, {WS_ZF}
        s_lshl_b32 s72, {CB}, 9
        s_lshl_b32 s36, {WV}, 4
        s_add_u32 s72, s72, s36
        s_lshl_b32 s72, s72, 10
        s_lshl_b32 s73, {RB}, 2
        s_add_u32 s73, s73, {WV}
        s_mul_i32 s73, s73, 28
        s_lshl_b32 s36, {CB}, 2
        s_add_u32 s73, s73, s36
        s_lshl_b32 s73, s73, 10
        s_add_u32 s73, s73, {WS_H}
        s_mul_i32 s75, {WV}, 7
        s_mul_i32 s36, {CB}, 112
        s_add_u32 s75, s75, s36
        s_lshl_b32 s75, s75, 10
        s_add_u32 s75, s75, {WS_WT}''')
        s.poll('v200','s35','v201'); s.stamp('z2n_seen')
        tk={}
        def ld(j,kk):
            n=(j&1)*16+kk; r=RING+4*n
            if j<8:
                if kk%4==0: A(f's_add_u32 s34, s72, {j*65536+kk*1024}')
                tk[(j,kk)]=A(f'buffer_load_dwordx4 v[{r}:{r+3}], v4, {sWS}, s34 offen offset:{(kk%4)*1024} sc1')
        for j in range(2):
            for kk in range(16): ld(j,kk)
        def epi(j,step):
            a=ACC[j&1]; ro=(j&1)*12288
            if step==0:
                for tau in range(1,4): A(f'ds_write_b128 v{20+tau}, v[{a+4*tau}:{a+4*tau+3}] offset:{ro}')
            if step==1: A('s_waitcnt lgkmcnt(0)\ns_barrier')
            if step==2:
                for u in range(3): A(f'ds_read_b128 v[{96+4*u}:{99+4*u}], v20 offset:{ro+1024*u}')
                s.tke=A(f'ds_read_b64 v[108:109], v24 offset:{Z1+j*2048}')
            if step==3:
                A.wait(s.tke)
                for r in range(4): A(f'v_add_f32 v{96+r}, v{96+r}, v{100+r}')
                for r in range(4): A(f'v_add_f32 v{104+r}, v{104+r}, v{a+r}')
            if step==4:
                for r in range(4): A(f'v_add_f32 v{96+r}, v{96+r}, v17')
                for r in range(4): A(f'v_add_f32 v{96+r}, v{96+r}, v{104+r}')
            if step==5:
                A('''v_cvt_pk_bf16_f32 v100, v96, v97
                v_cvt_pk_bf16_f32 v101, v98, v99
                v_lshlrev_b32 v104, 16, v108
                v_and_b32 v105, 0xffff0000, v108
                v_lshlrev_b32 v106, 16, v109
                v_and_b32 v107, 0xffff0000, v109''')
            if step==6:
                A('''v_lshlrev_b32 v96, 16, v100
                v_and_b32 v97, 0xffff0000, v100
                v_lshlrev_b32 v98, 16, v101
                v_and_b32 v99, 0xffff0000, v101''')
                for r in range(4): A(f'v_mul_f32 v{96+r}, v{96+r}, v{104+r}')
            if step==7:
                h=112+2*(j&1)
                A(f'v_cvt_pk_bf16_f32 v{h}, v96, v97\nv_cvt_pk_bf16_f32 v{h+1}, v98, v99')
                if j&1: A(f'buffer_store_dwordx4 v[112:115], v4, {sWS}, s73 offen offset:{(j>>1)*1024} sc1')
        sched={1:0,4:1,5:2,8:3,9:4,10:5,11:6,12:7}
        A.wait(s.tka)
        for j in range(8):
            a=ACC[j&1]
            for kk in range(16):
                r=RING+4*((j&1)*16+kk)
                A.wait(tk[(j,kk)])
                for tau in range(4):
                    d=f'v[{a+4*tau}:{a+4*tau+3}]'; n=tau*16+kk
                    A(f'v_mfma_f32_16x16x32_bf16 {d}, v[{r}:{r+3}], a[{4*n}:{4*n+3}], {"0" if kk==0 else d}')
                ld(j+2,kk)
                if j>0 and kk in sched: epi(j-1,sched[kk])
        s.stamp('g2loop')
        for st in range(8): epi(7,st)
        s.publish(f's_lshl_b32 s34, {RB}, 3\ns_add_u32 s34, s34, {CB}\ns_lshl_b32 s34, s34, 7\ns_add_u32 s34, s34, {WS_HF}')
        s.stamp('h_pub')
        for n in range(28):
            tau,k7=divmod(n,7); r=RING+4*n
            if k7==0: A(f's_xor_b32 s36, {WV}, {tau}\ns_mul_i32 s36, s36, {28*1024}\ns_add_u32 s74, s75, s36')
            if k7==4: A('s_add_u32 s74, s74, 4096')
            s.tkwt=A(f'buffer_load_dwordx4 v[{r}:{r+3}], v4, {sWS}, s74 offen offset:{(k7%4)*1024} sc1')

    def conv(s):
        A=s.A; F='v' if s.conv_first else 'a'
        A(f'''s_lshr_b32 s32, {WV}, 1
        s_mul_i32 s36, s32, {4*4160}
        s_add_u32 s36, s36, {RC+4056-3584-448}
        v_and_b32 v26, 3, v2
        v_mul_u32_u24 v26, 4160, v26
        v_lshrrev_b32 v27, 2, v2
        v_lshlrev_b32 v27, 3, v27
        v_sub_u32 v26, v26, v27
        v_lshl_add_u32 v26, v3, 4, v26
        v_add_u32 v26, s36, v26
        s_mul_i32 s36, s32, 4608
        s_add_u32 s36, s36, {UT+480-448}
        v_lshlrev_b32 v27, 5, v2
        v_lshl_add_u32 v28, v3, 3, v27
        v_lshl_add_u32 v27, v3, 4, v27
        v_add_u32 v27, s36, v27
        s_add_u32 s36, s36, {512-32}
        v_add_u32 v29, s36, v28
        s_lshl_b32 s36, {CB}, 5
        s_add_u32 s36, s36, {RB}
        s_lshl_b32 s36, s36, 1
        s_add_u32 s36, s36, s32
        s_lshl_b32 s36, s36, 12
        s_add_u32 s77, s36, {WS_AT}''')
        A.wait(s.tkut); A('s_waitcnt lgkmcnt(0)\ns_barrier')
        lo=s.lab('cvo'); le=s.lab('cve')
        A(f's_and_b32 s33, {WV}, 1\ns_cmp_lg_u32 s33, 0\ns_cbranch_scc1 {lo}')
        vm0=A.vm; vd0=A.vmd
        for var,cs in enumerate(((0,3,4,7),(1,2,5,6))):
            A.vm=vm0; A.vmd=vd0
            if var: A.label(lo)
            nm=cs[-1]+1
            base=lambda rho:128+64*(rho&1)
            def reads(rho):
                out=[]; b=base(rho)
                for m in range(nm):
                    out.append(f'ds_read_b128 {F}[{b+32+4*m}:{b+35+4*m}], v27 offset:{512*m+64*(7-rho)}')
                    o=512*(7-m)+64*(7-rho)
                    out.append(f'ds_read_b64 {F}[{b+4*m}:{b+4*m+1}], v26 offset:{o}')
                    out.append(f'ds_read_b64 {F}[{b+4*m+2}:{b+4*m+3}], v26 offset:{o+8}')
                return out
            for t in reads(0):
                tk=A(t)
                if A.lg%12==0: A('s_waitcnt lgkmcnt(8)')
            for rho in range(8):
                b=base(rho); A('s_waitcnt lgkmcnt(0)')
                nxt=reads(rho+1) if rho<7 else []
                mf=[(ci,c,mu) for mu in range(nm) for ci,c in enumerate(cs) if mu<=c]
                seen=set()
                for k,(ci,c,mu) in enumerate(mf):
                    d=f'v[{40+4*ci}:{43+4*ci}]'; first=(rho==0 and ci not in seen); seen.add(ci)
                    A(f'v_mfma_f32_16x16x32_bf16 {d}, {F}[{b+4*mu}:{b+4*mu+3}], {F}[{b+32+4*(c-mu)}:{b+35+4*(c-mu)}], {"0" if first else d}')
                    n=2 if k<len(nxt)//2+1 else 0
                    for t in nxt[2*k:2*k+2]: A(t)
                    if k==6 and nxt: A('s_waitcnt lgkmcnt(10)')
            for ci,c in enumerate(cs): A(f'ds_read_b64 v[{56+2*ci}:{57+2*ci}], v29 offset:{512*c}')
            A('s_waitcnt lgkmcnt(0)')
            for ci,c in enumerate(cs):
                y=40+4*ci; u=56+2*ci
                A(f'''v_lshlrev_b32 v64, 16, v{u}
                v_and_b32 v65, 0xffff0000, v{u}
                v_lshlrev_b32 v66, 16, v{u+1}
                v_and_b32 v67, 0xffff0000, v{u+1}
                v_fmac_f32 v{y}, s39, v64
                v_fmac_f32 v{y+1}, s39, v65
                v_fmac_f32 v{y+2}, s39, v66
                v_fmac_f32 v{y+3}, s39, v67
                v_cvt_pk_bf16_f32 v{u}, v{y}, v{y+1}
                v_cvt_pk_bf16_f32 v{u+1}, v{y+2}, v{y+3}
                buffer_store_dwordx2 v[{u}:{u+1}], v28, {sWS}, s77 offen offset:{512*c} sc1''')
            if var==0: A(f's_branch {le}')
        A.label(le)
        s.publish(f's_lshl_b32 s34, {CB}, 5\ns_add_u32 s34, s34, {RB}\ns_lshl_b32 s34, s34, 7\ns_add_u32 s34, s34, {WS_AF}')
        s.stamp('conv')

    def gemm3(s):
        A=s.A; RING=128; ACC=(64,80)
        A(f'''v_min_u32 v30, 6, v2
        v_lshlrev_b32 v30, 7, v30
        s_lshl_b32 s35, {RB}, 10
        s_add_u32 s35, s35, {WS_HF}
        s_mul_i32 s72, {RB}, 112
        s_mul_i32 s36, {WV}, 7
        s_add_u32 s72, s72, s36
        s_lshl_b32 s72, s72, 10
        s_add_u32 s72, s72, {WS_H}''')
        s.poll('v30','s35','v31'); s.stamp('h_seen')
        tk={}
        for T in range(4):
            for kk in range(7):
                n=T*7+kk
                if kk%4==0: A(f's_add_u32 s34, s72, {T*28*1024+kk*1024}')
                tk[n]=A(f'buffer_load_dwordx4 a[{4*n}:{4*n+3}], v4, {sWS}, s34 offen offset:{(kk%4)*1024} sc1')
        A(f'''s_lshl_b32 s36, {RB}, 8
        s_add_u32 s36, s36, {WS_GATE}
        v_lshlrev_b32 v31, 2, v19''')
        for T in range(4): tkg=A(f'buffer_load_dword v{32+T}, v31, {sWS}, s36 offen offset:{4*(32*(T>>1)+4*(T&1))} sc1')
        A(f'''v_and_b32 v36, 1, v2
        v_lshlrev_b32 v36, 4, v36
        v_lshlrev_b32 v36, v36, v255
        v_lshrrev_b32 v37, 2, v2
        v_cmp_eq_u32 vcc, v37, v3
        v_cndmask_b32 v36, 0, v36, vcc
        v_and_b32 v37, 2, v2
        v_cmp_eq_u32 vcc, 0, v37
        v_cndmask_b32 v37, v36, v5, vcc
        v_cndmask_b32 v36, v5, v36, vcc
        v_mov_b32 v40, 0
        v_mov_b32 v41, 0
        v_mov_b32 v44, 0
        v_mov_b32 v45, 0
        v_mul_u32_u24 v38, 896, v19
        v_lshl_add_u32 v38, v3, 3, v38
        s_mul_i32 s73, {RB}, 57344
        s_lshl_b32 s36, {CB}, 7
        s_add_u32 s73, s73, s36
        s_lshl_b32 s36, {WV}, 5
        s_add_u32 s73, s73, s36
        v_and_b32 v30, 31, v1
        v_lshlrev_b32 v30, 7, v30
        v_lshlrev_b32 v39, 12, v2
        v_lshl_add_u32 v39, v3, 4, v39
        s_lshl_b32 s75, {CB}, 2
        s_add_u32 s75, s75, {WV}
        s_lshl_b32 s75, s75, 16
        s_lshl_b32 s36, {RB}, 7
        s_add_u32 s75, s75, s36
        s_add_u32 s75, s75, {WS_AT}
        s_lshl_b32 s35, {CB}, 12
        s_add_u32 s35, s35, {WS_AF}''')
        def epi(T,step):
            a=ACC[T&1]; ro=(T&1)*12288
            if step==0:
                for tau in range(1,4): A(f'ds_write_b128 v{20+tau}, v[{a+4*tau}:{a+4*tau+3}] offset:{ro}')
            if step==1: A('s_waitcnt lgkmcnt(0)\ns_barrier')
            if step==2:
                for u in range(3): s.tke=A(f'ds_read_b128 v[{96+4*u}:{99+4*u}], v20 offset:{ro+1024*u}')
            if step==3:
                A.wait(s.tke)
                for r in range(4): A(f'v_add_f32 v{96+r}, v{96+r}, v{100+r}')
                for r in range(4): A(f'v_add_f32 v{104+r}, v{104+r}, v{a+r}')
            if step==4:
                A(f'v_sub_f32 v100, 1.0, v{32+T}')
                for r in range(4): A(f'v_add_f32 v{96+r}, v{96+r}, v{104+r}')
                for r in range(4): A(f'v_mul_f32 v{48+4*T+r}, v{96+r}, v100')
        sched={1:0,2:1,3:2,5:3,6:4}
        for T in range(4):
            a=ACC[T&1]
            for kk in range(7):
                n=T*7+kk; A.wait(tk[n])
                for tau in range(4):
                    d=f'v[{a+4*tau}:{a+4*tau+3}]'; r=RING+4*(tau*7+kk)
                    A(f'v_mfma_f32_16x16x32_bf16 {d}, v[{r}:{r+3}], a[{4*n}:{4*n+3}], {"0" if kk==0 else d}')
                if T>0 and kk in sched:
                    if T==1 and sched[kk]==4: A.wait(tkg)
                    epi(T-1,sched[kk])
        for st in range(5): epi(3,st)
        s.stamp('g3')
        s.poll('v30','s35','v31'); s.stamp('a_seen')
        for h in range(2): tk=A(f'buffer_load_dwordx4 v[{64+4*h}:{67+4*h}], v39, {sWS}, s75 offen offset:{64*h} sc1')
        A.wait(tk)
        for T in range(4):
            o=48+4*T; w=40+2*(1-(T&1))
            A(f'''v_cvt_pk_bf16_f32 v46, v{32+T}, v{32+T}
            v_and_b32 v42, v46, v36
            v_and_b32 v43, v46, v37
            v_mfma_f32_16x16x32_bf16 v[{o}:{o+3}], v[{64+4*(T>>1)}:{67+4*(T>>1)}], v[{w}:{w+3}], v[{o}:{o+3}]
            s_nop 3''')
        for T in range(4):
            o=48+4*T
            A(f'''v_cvt_pk_bf16_f32 v{o}, v{o}, v{o+1}
            v_cvt_pk_bf16_f32 v{o+1}, v{o+2}, v{o+3}
            s_add_u32 s34, s73, {896*(32*(T>>1)+4*(T&1))}
            buffer_store_dwordx2 v[{o}:{o+1}], v38, {sO}, s34 offen''')
        s.stamp('done')

    def build(s):
        A=s.A
        s.entry(); s.prologue(); s.phase1(); s.kgen(); s.load_ut()
        A('v_mov_b32 v255, 0xffff') if False else None
        if s.conv_first: s.conv()
        s.gemm2()
        if not s.conv_first: s.conv()
        A('v_mov_b32 v255, 0xffff')
        s.gemm3()
        if s.diag:
            A(f's_lshl_b32 s34, s2, 2\ns_add_u32 s34, s34, {WV}\ns_lshl_b32 s34, s34, 7\ns_add_u32 s34, s34, {WS_DBG}\ns_mov_b64 exec, 1')
            for i in range(s.nst): A(f'v_mov_b32 v6, s{80+i}\nbuffer_store_dword v6, v5, {sWS}, s34 offen offset:{4*i}')
        if s.spin:
            A.label('L_spin'); A(f's_memrealtime s[78:79]\ns_waitcnt lgkmcnt(0)\ns_sub_u32 s78, s78, {NONCE}\ns_cmp_lt_u32 s78, {s.spin}\ns_cbranch_scc1 L_spin')
        A.label('L_end'); A('s_endpgm')
        s.aux()
        A.label('L_codeend')
        A.raw(f'''.section .rodata,"a"
.p2align 6
.amdhsa_kernel {NAME}
  .amdhsa_next_free_vgpr 512
  .amdhsa_next_free_sgpr 102
  .amdhsa_accum_offset 256
  .amdhsa_group_segment_fixed_size 0
  .amdhsa_kernarg_size 128
  .amdhsa_user_sgpr_count 2
  .amdhsa_user_sgpr_kernarg_segment_ptr 1
  .amdhsa_system_sgpr_workgroup_id_x 1
.end_amdhsa_kernel''')
        return A.finish()

if __name__=='__main__':
    import argparse
    ap=argparse.ArgumentParser(); ap.add_argument('out'); ap.add_argument('--diag',action='store_true'); ap.add_argument('--dump',action='store_true'); ap.add_argument('--conv_first',action='store_true'); ap.add_argument('--spin',type=int,default=0)
    a=ap.parse_args()
    g=Gen(a.diag,a.dump,a.conv_first,a.spin); t=g.build(); open(a.out,'w').write(t)
    if a.diag: open(a.out+'.stamps','w').write(' '.join(g.stn))
    print('nops inserted',g.A.nops,'lines',t.count('\n'))
```

```python
import sys, struct
from asmlib import *
NAME='gated_mix__ssm_conv_s4d__mixer_gmlp__prompt_kernel'
def f2u(x): return '0x%08x'%struct.unpack('<I',struct.pack('<f',x))[0]

WS_Z2N=0; WS_H=0x400000; WS_UT=0x800000; WS_AT=0xA00000; WS_WT=0xC00000; WS_GATE=0xD00000
WS_STAT=0xD10000; WS_ZF=0xE00000; WS_HF=0xE08000; WS_AF=0xE10000; WS_XF=0xE18000; WS_DBG=0xF00000
XT=0; WR=57344; NSLOT=4; Z1=0; SBW=8*1088; SB=(123008,16384); TB=51200; TBW=57*288; KC=TB+4*TBW; KC1=160
RC=TB; UT=RC+8*4160; RED=16384
LDS_BYTES=163840
assert WR+NSLOT*16384<=SB[0] and SB[0]+4*SBW==KC+KC1*256 and KC+KC1*256+5632<=LDS_BYTES and SB[1]+4*SBW<=TB and KC+5632<=SB[0] and UT+9216<=KC
WPOS=[WR+(q%NSLOT)*16384 for q in range(11)]+[0,16384,32768]
SPIN=200000
LOG2E=1.4426950408889634
K0=-2*0.7978845608028654*LOG2E; K1=K0*0.044715
P=lambda i:f's[{40+2*i}:{41+2*i}]'
pX,pLA,pAI,pCR,pCI,pLDT,pDSK,_,pWI,pWSP,pBSP,pWO,pGW,pOUT,pDBG,pWS=range(16)
sX,sWI,sSP,sWS,sO='s[8:11]','s[12:15]','s[16:19]','s[20:23]','s[24:27]'
RB,CB,WV,NONCE='s28','s29','s30','s31'

class Gen:
    def __init__(s,diag=False,dump=False,conv_first=False,spin=0):
        s.spin=spin; s.fine=False; s.lst=[]; s.q=[]; s.mute=False; s.lead=11; s.dl0=16; s.dl1=0; s.dl2=2; s.exp=''; s.ROT=80
        s.A=Asm(); s.diag=diag; s.dump=dump; s.nst=0; s.nl=0; s.conv_first=conv_first; s.stn=[]
    def stamp(s,name):
        if not s.diag: return
        s.lflush()
        if s.nst>=32: return
        s.A(f's_memrealtime s[78:79]\ns_memtime s[98:99]\ns_waitcnt lgkmcnt(0)\nv_writelane_b32 v26, s78, {s.nst}\nv_writelane_b32 v26, s98, {32+s.nst}'); s.nst+=1; s.stn.append(name)
        assert s.nst<=32
    def lstamp(s,name,tag):
        if not (s.diag and tag in s.exp): return
        k=len(s.lst); assert k<14
        s.A(f's_memtime s[{40+2*k}:{41+2*k}]'); s.lst.append(name)
    def lflush(s):
        if not s.lst: return
        s.A('s_waitcnt lgkmcnt(0)')
        for k,n in enumerate(s.lst):
            if s.nst>=32: break
            s.A(f'v_writelane_b32 v26, s{40+2*k}, {32+s.nst}\nv_writelane_b32 v26, s78, {s.nst}'); s.nst+=1; s.stn.append(n)
        s.lst=[]
    def bg(s,n=1):
        while n and s.q:
            if isinstance(s.q[0],int):
                s.q[0]-=1
                if s.q[0]<=0: s.q.pop(0)
                return
            s.emit(s.q.pop(0)); n-=1
    def bg_flush(s):
        while s.q:
            x=s.q.pop(0)
            if not isinstance(x,int): s.emit(x)
    def emit(s,x):
        if callable(x): x()
        elif x: s.A(x)
    def weave(s,mf,fill,pre={}):
        for i,m in enumerate(mf):
            for x in pre.get(i,[]): s.emit(x)
            s.A(m)
            for x in fill.get(i,[]): s.emit(x)
    def lab(s,p): s.nl+=1; return f'L_{p}{s.nl}'
    def srd(s,dst,ptr,nbytes):
        d=int(dst[2:dst.index(':')]); p=40+2*ptr
        s.A(f's_mov_b32 s{d}, s{p}\ns_mov_b32 s{d+1}, s{p+1}\ns_mov_b32 s{d+2}, {nbytes}\ns_mov_b32 s{d+3}, 0x20000')
    def poll(s,vaddr,soff,vtmp):
        A=s.A; l=s.lab('poll'); e=s.lab('polld')
        A('s_mov_b32 s33, 0'); A.label(l)
        A(f'''buffer_load_dword {vtmp}, {vaddr}, {sWS}, {soff} offen sc1
        s_add_u32 s33, s33, 1
        s_waitcnt vmcnt(0)
        v_cmp_ne_u32 vcc, {NONCE}, {vtmp}
        s_cmp_gt_u32 s33, {SPIN}
        s_cbranch_scc1 {e}
        s_cbranch_vccnz {l}''')
        A.label(e)
    def publish(s,soff_expr):
        A=s.A; l=s.lab('pub')
        A('s_waitcnt vmcnt(0) lgkmcnt(0)\ns_barrier')
        A(f's_cmp_lg_u32 {WV}, 0\ns_cbranch_scc1 {l}')
        A(soff_expr)
        A(f'''v_mov_b32 v18, {NONCE}
        s_mov_b64 exec, 1
        buffer_store_dword v18, v5, {sWS}, s34 offen sc1
        s_mov_b64 exec, -1''')
        A.label(l)
        A.vm-=1
    def flag(s,soff_expr):
        A=s.A; l=s.lab('flg')
        A(f's_cmp_lg_u32 {WV}, 0\ns_cbranch_scc1 {l}')
        A(soff_expr.replace('s34','s37'))
        A(f'''v_mov_b32 v18, {NONCE}
        s_mov_b64 exec, 1
        buffer_store_dword v18, v5, {sWS}, s37 offen sc1
        s_mov_b64 exec, -1''')
        A.label(l); A.vm-=1
    def get_nonce(s):
        A=s.A; l=s.lab('nn'); e=s.lab('nnd')
        A('s_mov_b32 s33, 0'); A.label(l)
        A(f'''global_load_dword v18, v5, {P(pDBG)} sc1
        s_add_u32 s33, s33, 1
        s_waitcnt vmcnt(0)
        v_readfirstlane_b32 {NONCE}, v18
        s_cmp_gt_u32 s33, {SPIN}
        s_cbranch_scc1 {e}
        s_cmp_eq_u32 {NONCE}, 0
        s_cbranch_scc1 {l}''')
        A.label(e)

    def entry(s):
        A=s.A
        A.raw(f'; @launch grid=(256,1,1) block=(256,1,1) lds={LDS_BYTES}')
        A.raw(f'.amdgcn_target "amdgcn-amd-amdhsa--gfx950"\n.text\n.globl {NAME}\n.p2align 8\n.type {NAME},@function\n{NAME}:')
        A('''s_cmp_ge_u32 s2, 256
        s_cbranch_scc1 L_end
        s_load_dwordx16 s[40:55], s[0:1], 0
        s_load_dwordx16 s[56:71], s[0:1], 64''')
        if s.diag: A('s_memrealtime s[76:77]')
        A(f'''v_lshrrev_b32 v6, 6, v0
        v_and_b32 v1, 63, v0
        v_readfirstlane_b32 {WV}, v6
        v_and_b32 v2, 15, v0
        v_bfe_u32 v3, v0, 4, 2
        v_lshlrev_b32 v4, 4, v1
        v_mov_b32 v5, 0
        s_cmp_lt_u32 s2, 32
        s_cbranch_scc1 L_aux''')

    def aux(s):
        A=s.A; A.label('L_aux'); s.mainstn=s.stn; s.stn=[]; s.nst=0
        if s.diag: A('s_waitcnt lgkmcnt(0)\nv_mov_b32 v26, 0\nv_writelane_b32 v26, s76, 0'); s.nst=1; s.stn.append('start')
        A('s_memrealtime s[72:73]\ns_getpc_b64 s[74:75]')
        A.label('L_pc')
        A(f'''s_sub_u32 s74, s74, L_pc-{NAME}
        s_subb_u32 s75, s75, 0
        v_lshlrev_b32 v6, 7, v0
        s_waitcnt lgkmcnt(0)''')
        s.srd(sX,pX,2048*896); s.srd(sWI,pWO,896*896); s.srd(sWS,pWS,0x2000000)
        A(f'''s_lshl_b32 s32, s2, 2
        s_add_u32 s32, s32, {WV}
        s_cmp_lg_u32 s32, 0
        s_cbranch_scc1 L_aux1
        s_or_b32 {NONCE}, s72, 1
        v_mov_b32 v18, {NONCE}
        global_store_dword v5, v18, {P(pDBG)} sc1''')
        A.label('L_aux1')
        A(f'''v_cmp_gt_u32 vcc, L_codeend-{NAME}, v6
        s_and_saveexec_b64 s[36:37], vcc
        global_load_dword v7, v6, s[74:75]
        s_mov_b64 exec, s[36:37]
        v_add_u32 v6, 0x8000, v6
        v_cmp_gt_u32 vcc, L_codeend-{NAME}, v6
        s_and_saveexec_b64 s[36:37], vcc
        s_cbranch_execz L_aux2
        global_load_dword v7, v6, s[74:75]''')
        A.label('L_aux2')
        A('s_mov_b64 exec, s[36:37]')
        A(f's_mul_i32 s34, s2, 57344\ns_mul_i32 s35, {WV}, 14336\ns_add_u32 s34, s34, s35')
        for j in range(14):
            if j%4==0: A(f's_add_u32 m0, s35, {j*1024}\ns_add_u32 s36, s34, {j*1024}')
            A(f'buffer_load_dwordx4 v4, {sX}, s36 offen offset:{(j%4)*1024} lds')
        A(f's_mul_i32 s34, s2, 28672\ns_mul_i32 s35, {WV}, 7168\ns_add_u32 s34, s34, s35\ns_add_u32 s35, s35, 57344')
        for j in range(7):
            if j%4==0: A(f's_add_u32 m0, s35, {j*1024}\ns_add_u32 s36, s34, {j*1024}')
            A(f'buffer_load_dwordx4 v4, {sWI}, s36 offen offset:{(j%4)*1024} lds')
        A('v_mul_u32_u24 v8, 224, v3')
        for c in range(14): A(f'global_load_dwordx4 v[{64+4*c}:{67+4*c}], v8, {P(pGW)} offset:{16*c}')
        A(f'''v_lshrrev_b32 v9, 2, v2
        v_and_b32 v10, 3, v2
        v_lshl_add_u32 v11, v3, 3, v9
        v_mul_u32_u24 v11, 896, v11
        v_lshl_add_u32 v11, v10, 3, v11
        s_mul_i32 s34, {WV}, 224
        v_add_u32 v11, s34, v11
        v_lshl_add_u32 v12, v3, 2, v9
        v_mul_u32_u24 v12, 896, v12
        v_lshl_add_u32 v12, v10, 3, v12
        s_add_u32 s35, s34, 57344
        v_add_u32 v12, s35, v12
        v_lshlrev_b32 v13, 12, v2
        v_lshl_add_u32 v13, v3, 4, v13
        s_waitcnt vmcnt(0)
        s_barrier''')
        s.stamp('loaded')
        A(f'''s_mul_i32 s34, {WV}, {112*144}
        s_add_u32 s34, s34, 86016
        v_mul_u32_u24 v14, 144, v2
        v_lshl_add_u32 v14, v3, 4, v14
        v_add_u32 v14, s34, v14
        v_lshrrev_b32 v15, 3, v1
        v_and_b32 v16, 7, v1
        v_mul_u32_u24 v13, 144, v15
        v_lshl_add_u32 v13, v16, 4, v13
        v_add_u32 v13, s34, v13
        v_lshlrev_b32 v15, 12, v15
        v_lshl_add_u32 v15, v16, 4, v15''')
        for dt in range(7):
            for lh in range(2):
                r=48+8*(dt%2)+4*lh
                A(f'ds_read_b64_tr_b16 v[{r}:{r+1}], v11 offset:{32*dt+lh*32*896}')
                A(f'ds_read_b64_tr_b16 v[{r+2}:{r+3}], v11 offset:{32*dt+lh*32*896+4*896}')
            A('s_waitcnt lgkmcnt(0)')
            for lh in range(2):
                r=48+8*(dt%2)+4*lh
                A(f'ds_write_b128 v14, v[{r}:{r+3}] offset:{dt*16*144+64*lh}')
        A(f's_mul_i32 s34, {WV}, {7*16*4096}\ns_lshl_b32 s35, s2, 7\ns_add_u32 s34, s34, s35\ns_add_u32 s34, s34, {WS_UT}\ns_waitcnt lgkmcnt(0)')
        for j in range(14): A(f'ds_read_b128 v[{184+4*j}:{187+4*j}], v13 offset:{j*8*144}')
        A('s_waitcnt lgkmcnt(0)')
        for j in range(14): A(f'buffer_store_dwordx4 v[{184+4*j}:{187+4*j}], v15, {sWS}, s34 offen sc1\ns_add_u32 s34, s34, {8*4096}')
        s.stamp('ut_iss')
        A(f'''s_cmp_ge_u32 s2, 28
        s_cbranch_scc1 L_aux3
        s_mul_i32 s34, {WV}, {7*28*1024}
        s_lshl_b32 s35, s2, 10
        s_add_u32 s34, s34, s35
        s_add_u32 s34, s34, {WS_WT}''')
        for dt in range(7):
            r=36+4*(dt%2)
            A(f'ds_read_b64_tr_b16 v[{r}:{r+1}], v12 offset:{32*dt}\nds_read_b64_tr_b16 v[{r+2}:{r+3}], v12 offset:{32*dt+16*896}')
            A(f's_waitcnt lgkmcnt(0)\nbuffer_store_dwordx4 v[{r}:{r+3}], v4, {sWS}, s34 offen sc1\ns_add_u32 s34, s34, {28*1024}')
        A.label('L_aux3'); s.stamp('wt_iss')
        A(f'''s_lshl_b32 s34, {WV}, 4
        v_add_u32 v14, s34, v2
        v_mul_u32_u24 v14, 896, v14
        v_add_u32 v14, v14, v8
        v_mov_b32 v15, 0
        v_mov_b32 v16, 0''')
        for c in range(14): A(f'ds_read_b128 v[{128+4*c}:{131+4*c}], v14 offset:{16*c}')
        A('s_waitcnt lgkmcnt(0)')
        for c in range(56):
            A(f'''v_lshlrev_b32 v44, 16, v{128+c}
            v_and_b32 v45, 0xffff0000, v{128+c}
            v_lshlrev_b32 v46, 16, v{64+c}
            v_and_b32 v47, 0xffff0000, v{64+c}
            v_mul_f32 v44, v44, v46
            v_mul_f32 v45, v45, v47
            v_cvt_pk_bf16_f32 v44, v44, v45
            v_lshlrev_b32 v46, 16, v44
            v_and_b32 v47, 0xffff0000, v44
            v_add_f32 v15, v15, v46
            v_add_f32 v16, v16, v47''') if c<4 else None
        for c in range(4,56):
            A(f'''v_lshlrev_b32 v44, 16, v{128+c}
            v_and_b32 v45, 0xffff0000, v{128+c}
            v_lshlrev_b32 v46, 16, v{64+c}
            v_and_b32 v47, 0xffff0000, v{64+c}
            v_pk_mul_f32 v[44:45], v[44:45], v[46:47]
            v_cvt_pk_bf16_f32 v44, v44, v45
            v_lshlrev_b32 v46, 16, v44
            v_and_b32 v47, 0xffff0000, v44
            v_add_f32 v15, v15, v46
            v_add_f32 v16, v16, v47''')
        A(f'''v_add_f32 v15, v15, v16
        v_mov_b32 v16, v15
        v_permlane32_swap_b32 v15, v16
        v_add_f32 v15, v15, v16
        v_mov_b32 v16, v15
        v_permlane16_swap_b32 v15, v16
        v_add_f32 v15, v15, v16
        v_cvt_pk_bf16_f32 v15, v15, v15
        v_and_b32 v15, 0xffff0000, v15
        v_mul_f32 v15, {f2u(-LOG2E)}, v15
        v_exp_f32 v15, v15
        v_add_f32 v15, 1.0, v15
        v_rcp_f32 v15, v15
        v_cvt_pk_bf16_f32 v15, v15, v15
        v_and_b32 v15, 0xffff0000, v15
        s_lshl_b32 s34, s2, 8
        s_lshl_b32 s35, {WV}, 6
        s_add_u32 s34, s34, s35
        s_add_u32 s34, s34, {WS_GATE}
        v_lshlrev_b32 v16, 2, v2
        s_mov_b64 exec, 0xffff
        buffer_store_dword v15, v16, {sWS}, s34 offen sc1
        s_mov_b64 exec, -1''')
        s.stamp('gate')
        s.get_nonce()
        s.publish(f's_lshl_b32 s34, s2, 7\ns_add_u32 s34, s34, {WS_XF}')
        s.stamp('xpub'); s.dump_stamps()
        s.auxstn=s.stn; s.stn=s.mainstn
        A('s_endpgm')

    def dma_ops(s,q):
        A=s.A; kc=q%7; ops=[]
        def last(t):
            def f(): s.tkw[q]=A(t)
            return f
        if q<7:
            ops.append(f's_add_u32 m0, s72, {kc*8192}\nbuffer_load_dwordx4 v30, {sX}, s{80+kc} offen lds')
            ops.append(f'buffer_load_dwordx4 v31, {sX}, s{80+kc} offen offset:1024 lds')
        so=f's{87+kc}'
        pre='' if q<7 else f's_sub_u32 {so}, {so}, 1792\n'
        ops.append(f'{pre}s_add_u32 m0, s74, {WPOS[q]}\nbuffer_load_dwordx4 v32, {sWI}, {so} offen lds')
        for i in (1,2): ops.append(f'buffer_load_dwordx4 v{32+i}, {sWI}, {so} offen offset:{1024*i} lds')
        ops.append(last(f'buffer_load_dwordx4 v35, {sWI}, {so} offen offset:3072 lds'))
        return ops
    def prologue(s):
        A=s.A
        A(f'''s_sub_u32 s32, s2, 32
        s_and_b32 s33, s32, 7
        s_lshr_b32 s32, s32, 3
        s_lshr_b32 s34, s33, 1
        s_and_b32 s33, s33, 1
        s_lshl_b32 s34, s34, 3
        s_lshl_b32 s33, s33, 2
        s_and_b32 s35, s32, 7
        s_lshr_b32 s36, s32, 3
        s_add_u32 s36, s36, s33
        s_add_u32 s37, s35, s33
        s_cmp_lt_u32 s32, 24
        s_cselect_b32 s35, s35, s37
        s_cselect_b32 {CB}, s36, 3
        s_add_u32 {RB}, s34, s35
        s_lshl_b32 s33, {CB}, 1
        s_add_u32 s33, s33, s35
        s_mul_i32 s34, s33, 37
        s_lshr_b32 s34, s34, 8
        s_mul_i32 s34, s34, 7
        s_sub_u32 s33, s33, s34
        s_lshl_b32 s33, s33, 7
        s_mul_i32 s73, {RB}, 57344
        s_lshl_b32 s75, {CB}, 8
        s_add_u32 s75, s75, 1792
        s_and_b32 s3, {CB}, 3
        s_xor_b32 s3, s3, {WV}''')
        def rot(q):
            if q: A(f's_add_u32 s33, s33, 128\ns_cmp_eq_u32 s33, 896\ns_cselect_b32 s33, 0, s33')
            A(f's_add_u32 s{80+q}, s33, s73\ns_mul_i32 s34, s33, 1792\ns_add_u32 s{87+q}, s34, s75')
        rot(0); rot(1); A('s_mov_b32 s77, s33')
        A(f'''v_lshrrev_b32 v6, 3, v1
        v_and_b32 v7, 7, v1
        v_bfe_u32 v8, v1, 4, 1
        s_and_b32 s32, {WV}, 1
        s_lshl_b32 s32, s32, 2
        v_or_b32 v8, s32, v8
        v_xor_b32 v7, v7, v8
        s_lshl_b32 s33, {WV}, 4
        v_add_u32 v6, s33, v6
        v_mul_u32_u24 v6, 896, v6
        v_lshl_add_u32 v30, v7, 4, v6
        v_xor_b32 v7, 2, v7
        v_lshl_add_u32 v31, v7, 4, v6
        v_add_u32 v31, {8*896-1024}, v31
        v_add_u32 v6, s33, v3
        v_mul_u32_u24 v6, 3584, v6
        v_lshlrev_b32 v7, 1, v3
        v_xor_b32 v7, v7, v2
        v_lshl_add_u32 v32, v7, 4, v6
        v_add_u32 v33, {4*3584-1024}, v32
        v_xor_b32 v7, 8, v7
        v_lshl_add_u32 v34, v7, 4, v6
        v_add_u32 v34, {8*3584-2048}, v34
        v_add_u32 v35, {4*3584-1024}, v34
        s_lshl_b32 s72, {WV}, 11
        s_lshl_b32 s74, {WV}, 12
        s_waitcnt lgkmcnt(0)''')
        s.srd(sX,pX,2048*896); s.srd(sWI,pWI,448*3584)
        if s.diag: A('v_mov_b32 v26, 0\nv_writelane_b32 v26, s76, 0'); s.nst=1; s.stn.append('start')
        s.stamp('karg')
        s.tkw=[None]*14
        for q in range(2):
            for x in s.dma_ops(q): s.emit(x)
        s.stamp('dma_iss')
        A('s_mov_b32 s33, s77')
        for q in range(2,7): rot(q)
        s.srd(sSP,pWSP,2048*4096); s.srd(sWS,pWS,0x2000000); s.srd(sO,pOUT,2048*896)
        A(f'''s_lshl_b32 s36, {CB}, 5
        s_add_u32 s36, s36, {RB}
        s_lshl_b32 s37, s36, 2
        s_load_dword s38, {P(pLDT)}, s37
        s_load_dword s39, {P(pDSK)}, s37
        s_lshl_b32 s36, s36, 10
        s_lshl_b32 s37, {WV}, 8
        s_add_u32 s36, s36, s37
        v_lshl_add_u32 v28, v1, 2, s36''')
        A(f'''v_lshrrev_b32 v6, 2, v2
        v_and_b32 v7, 3, v2
        v_lshl_add_u32 v19, v6, 3, v7
        s_lshr_b32 s32, {WV}, 1
        s_and_b32 s33, {WV}, 1
        s_lshl_b32 s36, {RB}, 6
        s_lshl_b32 s37, s32, 5
        s_add_u32 s36, s36, s37
        s_lshl_b32 s37, s33, 2
        s_add_u32 s36, s36, s37
        v_add_lshl_u32 v29, v19, s36, 1''')
        A(f'''v_lshrrev_b32 v6, 1, v2
        v_xor_b32 v6, v6, v3
        v_lshlrev_b32 v6, 4, v6
        v_lshl_add_u32 v20, v19, 7, v6
        s_lshl_b32 s36, s32, 12
        v_add_u32 v20, s36, v20
        v_xor_b32 v21, 64, v20
        v_lshrrev_b32 v6, 2, v2
        v_lshl_add_u32 v7, v3, 3, v6
        v_lshlrev_b32 v7, 8, v7
        v_and_b32 v8, 3, v2
        v_lshl_add_u32 v7, v8, 3, v7
        v_add_u32 v7, {WR}, v7
        v_and_b32 v8, 1, v3
        v_xor_b32 v8, s33, v8
        v_lshl_or_b32 v6, v8, 2, v6''')
        for ft in range(4):
            A(f'v_xor_b32 v8, {ft}, v6\nv_lshl_add_u32 v{22+ft}, v8, 5, v7')
        for v in range(11):
            r=6+v
            A(f'''v_lshlrev_b32 v150, 3, v0
            v_sub_u32 v150, {2047-v}, v150
            v_max_i32 v151, 0, v150
            v_cvt_f32_i32 v151, v151
            v_cvt_pk_bf16_f32 v151, v151, v5
            v_subrev_u32 v151, 0x4280, v151
            v_max_i32 v150, -1, v150
            v_min_i32 v150, 127, v150
            v_max_i32 v150, v150, v151
            v_lshlrev_b32 v150, 2, v150
            v_add_u32 v{r}, {KC+16}, v150''')
        A(f'''s_waitcnt lgkmcnt(0)
        s_lshl_b32 s36, s32, 4
        s_lshr_b32 s38, s38, s36
        s_lshl_b32 s38, s38, 16
        s_lshr_b32 s39, s39, s36
        s_lshl_b32 s39, s39, 16''')

    def g1_reads(s,q,sub,b):
        A=s.A; B=104+16*b; kc=q%7; L=[]
        if q<7:
            for T in range(2):
                r=128+8*(2*kc+sub)+4*T
                L.append(f'ds_read_b128 a[{r}:{r+3}], v{20+sub} offset:{kc*8192+T*512}')
        for ft in range(4):
            a,o=(22+ft,WPOS[q]-WR) if q<11 else (136+ft,WPOS[q]); o+=sub*8192; r=B+4*ft
            L.append(f'ds_read_b64_tr_b16 v[{r}:{r+1}], v{a} offset:{o}')
            L.append(f'ds_read_b64_tr_b16 v[{r+2}:{r+3}], v{a} offset:{o+1024}')
        s.tr[(q,sub)]=[None]*len(L)
        def mk(i,t):
            def f(): s.tr[(q,sub)][i]=A(t)
            return f
        return [mk(i,t) for i,t in enumerate(L)]
    def g1_step(s,q,sub,nxt,extra,head=[]):
        A=s.A; B=104+16*sub; z1=q>=7; acc=72 if z1 else 40; first=(q%7==0 and sub==0); mf=[]
        for ft in range(4):
            for T in range(2):
                r=128+8*(2*(q%7)+sub)+4*T
                d=f'v[{acc+16*T+4*ft}:{acc+16*T+4*ft+3}]'; x=f'a[{r}:{r+3}]'; w=f'v[{B+4*ft}:{B+3+4*ft}]'
                a,bb=(w,x) if z1 else (x,w)
                mf.append(f'v_mfma_f32_16x16x32_bf16 {d}, {a}, {bb}, {"0" if first else d}')
        tr=s.tr[(q,sub)]
        pre={0:[lambda:A.wait(tr[-5])],4:[lambda:A.wait(tr[-1])]}
        fill={i:list(nxt[2*i:2*i+2]) for i in range(5)}
        fill[0]=list(head)+fill[0]
        gaps=[5,6,7,7,7,7,7,7,7,7,7,7]
        for k,x in enumerate(extra): fill.setdefault(gaps[k],[]).append(x)
        s.weave(mf,fill,pre)
    def gemm1_half(s,q0,plan,sync):
        A=s.A
        for q in range(q0,q0+7):
            s.g1_step(q,0,s.g1_reads(q,1,1),plan.get((q,0),[]))
            head=[]
            if q in sync: head=[lambda:s.lstamp(f'pre{q}','g1'),lambda:A.wait(s.tkw[sync[q]] if sync[q] else None),'s_barrier',lambda:s.lstamp(f'bar{q}','g1')]
            s.g1_step(q,1,s.g1_reads(q+1,0,0) if q%7<6 else [],plan.get((q,1),[]),head)
    def gelu(s,base,tmp):
        A=s.A
        for g0 in range(0,32,8):
            pr=[(base+g0+2*j,tmp+2*j) for j in range(4)]
            for z,t in pr: A(f'v_pk_mul_f32 v[{t}:{t+1}], v[{z}:{z+1}], v[{z}:{z+1}]')
            for z,t in pr: A(f'v_pk_fma_f32 v[{t}:{t+1}], v[{t}:{t+1}], v[254:255], v[254:255] op_sel:[0,1,0] op_sel_hi:[1,1,0]')
            for z,t in pr: A(f'v_pk_mul_f32 v[{t}:{t+1}], v[{t}:{t+1}], v[{z}:{z+1}]')
            s.bg()
            for z,t in pr: A(f'v_exp_f32 v{t}, v{t}\nv_exp_f32 v{t+1}, v{t+1}')
            s.bg()
            for z,t in pr: A(f'v_pk_add_f32 v[{t}:{t+1}], v[{t}:{t+1}], 1.0 op_sel_hi:[1,0]')
            for z,t in pr: A(f'v_rcp_f32 v{t}, v{t}\nv_rcp_f32 v{t+1}, v{t+1}')
            s.bg()
            for z,t in pr: A(f'v_pk_mul_f32 v[{z}:{z+1}], v[{z}:{z+1}], v[{t}:{t+1}]')
            s.bg()
    def a_setup(s):
        s.A(f'''v_lshrrev_b32 v250, 5, v1
        v_and_b32 v251, 31, v1
        v_lshlrev_b32 v252, 1, v250
        v_xor_b32 v251, v251, v252
        v_lshlrev_b32 v251, 4, v251
        v_lshl_add_u32 v253, v250, 12, v251
        v_add_u32 v252, {8192-1088}, v253
        v_lshrrev_b32 v250, 1, v2
        v_mul_u32_u24 v250, 1088, v250
        v_and_b32 v251, 1, v2
        v_lshl_add_u32 v250, v251, 9, v250
        v_lshlrev_b32 v251, 1, v251
        v_xor_b32 v251, v251, v3
        v_lshl_add_u32 v250, v251, 4, v250
        s_mul_i32 s94, {WV}, {SBW}
        s_add_u32 s95, s94, {SB[1]}
        s_add_u32 s94, s94, {SB[0]}
        v_add_u32 v251, s95, v250
        v_add_u32 v250, s94, v250
        s_lshl_b32 s36, {RB}, 18
        s_lshl_b32 s37, s3, 10
        s_add_u32 s37, s36, s37''')
        for tau in range(4):
            s.A(f'''s_xor_b32 s36, {WV}, {tau}
            s_lshr_b32 s33, s36, 1
            s_and_b32 s36, s36, 1
            s_lshl_b32 s33, s33, 17
            s_lshl_b32 s36, s36, 14
            s_add_u32 s36, s36, s33
            s_add_u32 s{4+tau}, s36, s37''')
        s.tka={}; s.tkt={}
    def a_ops(s,h):
        A=s.A; tau,hh=divmod(h,2); buf=h&1; ops=[]
        for r in range(0,8,2):
            ops.append(f's_add_u32 m0, s{94+buf}, {1088*r}\ns_add_u32 s100, s{4+tau}, {(r>>1)*32768+512*hh}\nbuffer_load_dwordx4 v253, {sSP}, s100 offen lds')
            ops.append(f's_add_u32 m0, s{94+buf}, {1088*r}\nbuffer_load_dwordx4 v252, {sSP}, s100 offen offset:1088 lds')
        t=ops.pop(); t0=ops[0]
        def f(): s.tka[h]=A(t)
        def f0():
            if h>=2: A.wait(s.tkt[h-2])
            A(t0)
        return [f0]+ops[1:]+[f]
    def a_takes(s,h):
        A=s.A
        def mk(k):
            def f():
                if k==0: A.wait(s.tka[h])
                for j in (k,k+1): s.tkt[h]=A(f'ds_read_b128 a[{4*(8*h+j)}:{4*(8*h+j)+3}], v{250+(h&1)} offset:{64*j}')
            return f
        return [mk(k) for k in (0,2,4,6)]
    def poll_issue(s,vaddr,soff,vtmp):
        return s.A(f'buffer_load_dword {vtmp}, {vaddr}, {sWS}, {soff} offen sc1')
    def poll_check(s,tk,vaddr,soff,vtmp):
        A=s.A; l=s.lab('ok'); A.wait(tk)
        A(f'v_cmp_ne_u32 vcc, {NONCE}, {vtmp}\ns_cbranch_vccz {l}')
        st=(A.vm,A.vmd); s.poll(vaddr,soff,vtmp); A.vm,A.vmd=st
        A.label(l)
    def phase1(s):
        A=s.A
        A(f'''v_mov_b32 v254, {f2u(K0)}
        v_mov_b32 v255, {f2u(K1)}''')
        s.a_setup()
        s.stamp('prolog')
        for x in s.dma_ops(2): s.emit(x)
        A.wait(s.tkw[0]); A('s_barrier'); s.stamp('first')
        s.tr={}
        for x in s.g1_reads(0,0,0): x()
        plan={}
        def spread(q,ops):
            h=len(ops)//2
            plan.setdefault((q,1),[]).extend(ops[:h]); plan.setdefault((q+1,0),[]).extend(ops[h:])
        def par():
            A(f'global_load_dword v36, v28, {P(pLA)}\nglobal_load_dword v37, v28, {P(pAI)}\nglobal_load_dword v38, v28, {P(pCR)}')
            s.tkpar=A(f'global_load_dword v39, v28, {P(pCI)}'); s.tkb=A(f'global_load_ushort v17, v29, {P(pBSP)}')
        if 'g1' in s.exp: par()
        for q in range(6): spread(q,s.dma_ops(q+3))
        def nl(): s.tkn=A(f'global_load_dword v18, v5, {P(pDBG)} sc1')
        plan[(4,1)].append(nl)
        s.gemm1_half(0,plan,{q:q+1 for q in range(6)}); s.stamp('g1z2'); tkn=s.tkn
        for ft in range(4): A(f'v_subrev_u32 v{136+ft}, {WR}, v{22+ft}')
        A('s_barrier')
        for q in range(9,14): s.q+=s.dma_ops(q)
        if 'g1' not in s.exp: s.q.append(par)
        s.gelu(40,152)
        for T in range(2):
            for h in range(2):
                z=lambda ft:f'v[{40+16*T+4*ft+2*h}:{41+16*T+4*ft+2*h}]'
                S=f'v[{152+4*T+2*h}:{153+4*T+2*h}]'; Q=f'v[{160+4*T+2*h}:{161+4*T+2*h}]'
                A(f'''v_pk_add_f32 {S}, {z(0)}, {z(1)}
                v_pk_mul_f32 {Q}, {z(0)}, {z(0)}
                v_pk_add_f32 {S}, {S}, {z(2)}
                v_pk_fma_f32 {Q}, {z(1)}, {z(1)}, {Q}
                v_pk_add_f32 {S}, {S}, {z(3)}
                v_pk_fma_f32 {Q}, {z(2)}, {z(2)}, {Q}
                v_pk_fma_f32 {Q}, {z(3)}, {z(3)}, {Q}'''); s.bg()
        s.bg(2)
        for X in (152,160):
            for j in range(4): A(f'v_add_f32_dpp v{X+j}, v{X+j}, v{X+j} row_shl:8 row_mask:0xf bank_mask:0x3')
        for X in (152,160):
            for j in range(4): A(f'v_add_f32_dpp v{X+j}, v{X+j+4}, v{X+j+4} row_shr:8 row_mask:0xf bank_mask:0xc')
        for X in (152,160):
            for j in range(2): A(f'v_add_f32_dpp v{X+j}, v{X+j}, v{X+j} row_shl:4 row_mask:0xf bank_mask:0x5')
        for X in (152,160):
            for j in range(2): A(f'v_add_f32_dpp v{X+j}, v{X+j+2}, v{X+j+2} row_shr:4 row_mask:0xf bank_mask:0xa')
        for qp in ('[1,0,3,2]','[2,3,0,1]'):
            for r in (152,153,160,161): A(f'v_add_f32_dpp v{r}, v{r}, v{r} quad_perm:{qp} row_mask:0xf bank_mask:0xf')
        A.wait(tkn); l=s.lab('n'); A(f'v_readfirstlane_b32 {NONCE}, v18\ns_cmp_lg_u32 {NONCE}, 0\ns_cbranch_scc1 {l}')
        vm,vd=A.vm,A.vmd; s.get_nonce(); A.vm,A.vmd=vm,vd; A.label(l)
        A(f'''v_mov_b32 v168, v152
        v_mov_b32 v169, v160
        s_mov_b32 exec_lo, 0xaaaaaaaa
        s_mov_b32 exec_hi, 0xaaaaaaaa
        v_mov_b32 v168, v153
        v_mov_b32 v169, v161
        s_mov_b64 exec, -1
        v_mov_b32 v170, {NONCE}
        v_mov_b32 v171, {NONCE}
        v_lshrrev_b32 v172, 2, v2
        v_and_b32 v173, 1, v2
        v_lshl_add_u32 v172, v172, 1, v173
        v_lshl_add_u32 v172, v3, 3, v172
        v_lshlrev_b32 v172, 4, v172
        s_mul_i32 s36, {RB}, 14336
        s_lshr_b32 s32, {WV}, 1
        s_lshl_b32 s37, s32, 9
        s_add_u32 s36, s36, s37
        s_add_u32 s76, s36, {WS_STAT}
        s_and_b32 s33, {WV}, 1
        s_lshl_b32 s37, {CB}, 1
        s_add_u32 s37, s37, s33
        s_lshl_b32 s37, s37, 10
        s_add_u32 s36, s76, s37
        s_mov_b32 exec_lo, 0x33333333
        s_mov_b32 exec_hi, 0x33333333
        buffer_store_dwordx4 v[168:171], v172, {sWS}, s36 offen sc1
        s_mov_b64 exec, -1''')
        s.stamp('stats_pub')
        A(f'''v_and_b32 v160, 7, v2
        v_lshl_add_u32 v160, v3, 3, v160
        v_lshrrev_b32 v161, 3, v2
        v_lshl_add_u32 v160, v161, 6, v160
        v_lshlrev_b32 v160, 4, v160
        s_add_u32 s77, s76, 4096
        s_add_u32 s96, s76, 8192
        s_add_u32 s97, s76, 12288''')
        def stat_loads():
            for c in range(7): A(f'buffer_load_dwordx4 v[{168+4*c}:{171+4*c}], v160, {sWS}, {["s76","s77","s96","s97"][c//2]} offen offset:{2048*(c%2)} sc1')
        s.bg_flush()
        A.wait(s.tkw[9]); A('s_barrier')
        for x in s.g1_reads(7,0,0): x()
        s.gemm1_half(7,{(12,1):[stat_loads]},{9:13,13:None}); s.stamp('g1z1')
        l=s.lab('st'); e=s.lab('std'); f=s.lab('stf')
        A(f's_mov_b32 s33, 0\ns_branch {f}'); A.label(l)
        stat_loads(); A.label(f)
        A(f's_add_u32 s33, s33, 1\ns_waitcnt vmcnt(0)')
        for c in range(7): A(f'v_xor_b32 v{170+4*c}, {NONCE}, v{170+4*c}')
        A(f'''v_or3_b32 v161, v170, v174, v178
        v_or3_b32 v161, v161, v182, v186
        v_or3_b32 v161, v161, v190, v194
        v_cmp_ne_u32 vcc, 0, v161
        s_cmp_gt_u32 s33, {SPIN}
        s_cbranch_scc1 {e}
        s_cbranch_vccnz {l}''')
        A.label(e); s.stamp('stats_seen')
        A(f'''v_pk_add_f32 v[168:169], v[168:169], v[172:173]
        v_pk_add_f32 v[176:177], v[176:177], v[180:181]
        v_pk_add_f32 v[184:185], v[184:185], v[188:189]
        v_pk_add_f32 v[168:169], v[168:169], v[192:193]
        v_pk_add_f32 v[176:177], v[176:177], v[184:185]
        v_pk_add_f32 v[168:169], v[168:169], v[176:177]
        v_add_f32_dpp v168, v168, v168 row_ror:8 row_mask:0xf bank_mask:0xf
        v_add_f32_dpp v169, v169, v169 row_ror:8 row_mask:0xf bank_mask:0xf
        v_mul_f32 v168, {f2u(1/896)}, v168
        v_mul_f32 v169, {f2u(1/896)}, v169
        v_fma_f32 v169, -v168, v168, v169
        v_max_f32 v169, 0, v169
        v_add_f32 v169, {f2u(1e-5)}, v169
        v_rsq_f32 v169, v169
        v_mul_f32 v168, -1.0, v168
        v_mul_f32 v168, v168, v169''')
        for j in range(8): A(f'v_mov_b32_dpp v{152+j}, v169 row_newbcast:{j} row_mask:0xf bank_mask:0xf')
        for j in range(8): A(f'v_mov_b32_dpp v{172+j}, v168 row_newbcast:{j} row_mask:0xf bank_mask:0xf')
        A(f'''s_lshr_b32 s32, {WV}, 1
        s_and_b32 s33, {WV}, 1
        s_lshl_b32 s36, {CB}, 3
        s_lshl_b32 s37, s33, 2
        s_add_u32 s36, s36, s37
        s_lshl_b32 s36, s36, 6
        s_lshl_b32 s37, {RB}, 1
        s_add_u32 s36, s36, s37
        s_add_u32 s36, s36, s32
        s_lshl_b32 s36, s36, 10''')
        for ft in range(4):
            o=180+4*ft
            for T in range(2):
                for h in range(2):
                    z=40+16*T+4*ft+2*h; j=4*T+2*h
                    A(f'v_pk_fma_f32 v[{z}:{z+1}], v[{z}:{z+1}], v[{152+j}:{153+j}], v[{172+j}:{173+j}]')
            for T in range(2):
                for h in range(2):
                    z=40+16*T+4*ft+2*h
                    A(f'v_cvt_pk_bf16_f32 v{o+2*T+h}, v{z}, v{z+1}')
            A(f'buffer_store_dwordx4 v[{o}:{o+3}], v4, {sWS}, s36 offen sc1')
            if ft<3: A('s_add_u32 s36, s36, 0x10000')
        s.stamp('z2n_st'); s.tkz=('vm',A.vm)
        s.q+=[2]+[y for x in s.a_ops(0) for y in (x,1)]
        s.gelu(72,152)
        A(f'''s_lshr_b32 s32, {WV}, 1
        s_and_b32 s33, {WV}, 1
        s_lshl_b32 s36, s33, 13
        s_lshl_b32 s37, s32, 10
        s_add_u32 s36, s36, s37
        v_lshl_add_u32 v160, v1, 3, s36''')
        for T in range(2):
            for ft in range(4):
                z=72+16*T+4*ft; t=152+2*((4*T+ft)%4)
                A(f'v_cvt_pk_bf16_f32 v{t}, v{z}, v{z+1}\nv_cvt_pk_bf16_f32 v{t+1}, v{z+2}, v{z+3}\nds_write_b64 v160, v[{t}:{t+1}] offset:{Z1+ft*2048+T*512}')
        s.stamp('gelu1')
        A.wait(s.tkz); A('s_waitcnt lgkmcnt(0)\ns_barrier')
        s.flag(f's_lshl_b32 s34, {CB}, 5\ns_add_u32 s34, s34, {RB}\ns_lshl_b32 s34, s34, 7\ns_add_u32 s34, s34, {WS_ZF}')
        s.stamp('z2n_pub')
        sp=lambda L,d=1:[y for x in L for y in ((x,d) if d else (x,))]
        s.q+=sp(s.a_ops(1),2)+[s.dl0]
        for h in range(8):
            s.q+=s.a_takes(h)
            if h==0: s.q+=[s.dl1]
            if h+2<8: s.q+=[1]+s.a_ops(h+2)
            if h>=1 and h<7: s.q+=[s.dl2]

    def cmul(s,d,x,w):
        s.A(f'v_pk_mul_f32 v[{d}:{d+1}], v[{x}:{x+1}], v[{w}:{w+1}] op_sel_hi:[1,0]') if d!=x else None
    def kgen(s):
        A=s.A
        def cm(pairs):
            for k,(d,x,w) in enumerate(pairs): A(f'v_pk_mul_f32 v[{200+2*k}:{201+2*k}], v[{x}:{x+1}], v[{w}:{w+1}] op_sel_hi:[1,0]')
            for k,(d,x,w) in enumerate(pairs): A(f'v_pk_fma_f32 v[{d}:{d+1}], v[{x}:{x+1}], v[{w}:{w+1}], v[{200+2*k}:{201+2*k}] op_sel:[1,1,0] op_sel_hi:[0,1,1] neg_lo:[1,0,0]')
        wr=[0]; pend=[]
        def put(row,r):
            t=216+(wr[0]%4); wr[0]+=1
            A(f'v_cvt_pk_bf16_f32 v{t}, v{r}, v{r+1}\nv_cvt_pk_bf16_f32 v{140+row}, v{r+64}, v{r+65}')
            if pend: A(pend.pop())
            pend.append(f'ds_write_b32 v230, v{t} offset:{row*288}')
            s.bg()
        both=lambda L:[(d+o,x+o,w+o) for d,x,w in L for o in (0,64)]
        W1,W16,W256,X,Y,AN=40,42,44,46,48,50
        PE=lambda e:52+2*(e-1)
        A(f'''s_mul_i32 s36, {WV}, {TBW}
        s_add_u32 s36, s36, {TB}
        v_lshl_add_u32 v230, v1, 2, s36
        v_mul_u32_u24 v231, 288, v2
        v_lshl_add_u32 v231, v3, 4, v231
        v_add_u32 v231, s36, v231
        v_mov_b32 v232, s38
        v_mul_f32 v232, {f2u(LOG2E)}, v232
        v_exp_f32 v232, v232
        v_cvt_pk_bf16_f32 v232, v232, v232
        v_and_b32 v232, 0xffff0000, v232''')
        A.wait(s.tkpar)
        for o,un in ((0,lambda d,r:f'v_lshlrev_b32 v{d}, 16, v{r}'),(64,lambda d,r:f'v_and_b32 v{d}, 0xffff0000, v{r}')):
            A(f'''{un(70+o,36)}
            {un(71+o,37)}
            {un(X+o,38)}
            {un(X+1+o,39)}
            v_mul_f32 v{70+o}, {f2u(LOG2E)}, v{70+o}
            v_exp_f32 v{70+o}, v{70+o}
            v_add_f32 v{72+o}, v232, v232
            v_cvt_pk_bf16_f32 v{70+o}, v{70+o}, v{70+o}
            v_mul_f32 v{X+o}, v{X+o}, v{72+o}
            v_and_b32 v{70+o}, 0xffff0000, v{70+o}
            v_mul_f32 v{X+1+o}, v{X+1+o}, v{72+o}
            v_mul_f32 v{70+o}, v{70+o}, v232
            v_mul_f32 v{71+o}, v{71+o}, v232
            v_mul_f32 v{70+o}, {f2u(-LOG2E)}, v{70+o}
            v_mul_f32 v{71+o}, 0.15915494, v{71+o}''')
            for W,p,sg in ((W1,1.0,-1),(W16,16.0,1),(W256,256.0,-1)):
                A(f'''v_mul_f32 v{72+o}, {f2u(p)}, v{70+o}
                v_mul_f32 v{73+o}, {f2u(p*sg)}, v{71+o}
                v_exp_f32 v{72+o}, v{72+o}
                v_fract_f32 v{73+o}, v{73+o}
                v_cos_f32 v{W+o}, v{73+o}
                v_sin_f32 v{W+1+o}, v{73+o}
                v_mul_f32 v{W+o}, v{W+o}, v{72+o}
                v_mul_f32 v{W+1+o}, v{W+1+o}, v{72+o}''')
        A(f'v_mov_b32 v156, 0x00003f80\nds_write_b32 v230, v156 offset:{16*288}'); wr[0]=1
        put(0,X); put(17,W1); put(32,W256)
        prev=W1
        for i in range(1,16):
            L=[(X,X,W16)]
            c=i+1
            if c<16:
                d=PE(c//2) if c%2==0 else Y
                L.append((d,prev,W1))
            cm(both(L)); put(i,X)
            if c<16: put(16+c,d); prev=d
        for e in range(1,8,2):
            L=[(Y,W256,PE(e))]+([(74,W256,PE(e+1))] if e<7 else [])
            cm(both(L)); put(32+e,Y)
            if e<7: put(33+e,74)
        cm(both([(AN,W256,W256)])); put(40,AN)
        for b in range(2,8):
            if b<4:
                row=40+4*(b-2)
                cm(both([(Y,AN,PE(2)),(74,AN,PE(4))])); put(row+1,Y); put(row+2,74)
                cm(both([(Y,AN,PE(6)),(AN,AN,W256)])); put(row+3,Y)
            else:
                cm(both([(Y,AN,PE(4)),(AN,AN,W256)])); put(48+2*(b-4)+1,Y)
            put(44 if b==2 else 48+2*(b-3),AN)
        A(pend.pop())
        s.stamp('ktab')
        A(f'v_and_b32 v233, 31, v1\nv_lshlrev_b32 v233, 7, v233\ns_mov_b32 s35, {WS_XF}')
        s.tkxf=s.poll_issue('v233','s35','v234')
        for rnd in range(2):
            if rnd:
                for row in range(57):
                    A(f'ds_write_b32 v230, v{140+row} offset:{row*288}')
                    if row%3==2: s.bg()
            A('s_waitcnt lgkmcnt(0)')
            tks=[]
            for ks in range(4):
                b=64+16*ks
                for t in range(4): tk=A(f'ds_read_b128 v[{b+4*t}:{b+4*t+3}], v231 offset:{t*16*288+64*ks}')
                tks.append(tk)
            for ks in range(4):
                b=64+16*ks; A.wait(tks[ks])
                for t in range(3): A(f'v_mfma_f32_16x16x32_bf16 v[{40+4*t}:{43+4*t}], v[{b+4+4*t}:{b+7+4*t}], v[{b}:{b+3}], {"0" if ks+rnd==0 else f"v[{40+4*t}:{43+4*t}]"}')
        s.stamp('kmfma')
        A(f'''s_and_b32 s36, {WV}, 1
        s_mul_i32 s36, s36, 2816
        s_lshr_b32 s37, {WV}, 1
        s_mul_i32 s37, s37, {KC1*256}
        s_add_u32 s36, s36, s37
        s_add_u32 s36, s36, {KC+16}
        v_lshlrev_b32 v200, 6, v2
        v_lshl_add_u32 v200, v3, 4, v200
        v_add_u32 v200, s36, v200
        v_lshlrev_b32 v201, 5, v2
        v_lshl_add_u32 v201, v3, 4, v201
        v_add_u32 v201, {4*256}, v201
        v_lshlrev_b32 v202, 4, v2
        v_lshl_add_u32 v202, v3, 8, v202
        v_add_u32 v202, {4*(384-128)}, v202
        s_mov_b32 exec_lo, 0x0
        s_mov_b32 exec_hi, 0xffffffff
        v_mov_b32 v201, v202
        s_mov_b64 exec, -1
        v_add_u32 v201, s36, v201
        v_lshlrev_b32 v202, 3, v2
        v_lshl_add_u32 v202, v3, 8, v202
        v_add_u32 v202, s36, v202
        v_mov_b32 v203, s36
        ds_write_b128 v200, v[40:43]
        ds_write_b128 v201, v[44:47]
        s_mov_b32 exec_lo, 0xffffffff
        s_mov_b32 exec_hi, 0xffff
        ds_write_b64 v202, v[48:49] offset:{4*512}
        s_mov_b32 exec_lo, 0xffffffff
        s_mov_b32 exec_hi, 0x0
        ds_write_b64 v202, v[50:51] offset:{4*544}
        s_mov_b64 exec, 1
        v_add_u32 v203, -4, v203
        ds_write_b32 v203, v5
        s_mov_b64 exec, -1''')
        s.bg(2)
        A('s_waitcnt lgkmcnt(0)\ns_barrier')
        s.stamp('kcomp')
    def kexpand(s):
        A=s.A
        A(f'v_lshlrev_b32 v200, 4, v0\nv_add_u32 v200, {RC}, v200')
        tk=[]
        for d in range(2):
            b=40+24*d
            for v in range(11): t=A(f'ds_read2st64_b32 v[{b+2*v}:{b+2*v+1}], v{6+v} offset0:{KC1*d} offset1:{KC1*d+11}')
            tk.append(t); s.bg()
        for d in range(2):
            b=40+24*d; A.wait(tk[d])
            for v in range(11): A(f'v_add_f32 v{b+2*v}, v{b+2*v}, v{b+2*v+1}')
            s.bg()
            for q in range(4):
                o=96+16*d+4*q
                for t in range(4): A(f'v_cvt_pk_bf16_f32 v{o+t}, v{b+2*(3-q+2*t)}, v{b+2*(4-q+2*t)}')
                s.bg()
                A(f'ds_write_b128 v200, v[{o}:{o+3}] offset:{(4*d+q)*4160}')
        A(f'''v_mov_b32 v204, 0
        v_mov_b32 v205, 0
        v_mov_b32 v206, 0
        v_mov_b32 v207, 0
        v_lshrrev_b32 v201, 1, v2
        v_mul_u32_u24 v201, 4160, v201
        v_and_b32 v202, 1, v2
        v_lshl_add_u32 v201, v202, 4, v201
        ds_write_b128 v201, v[204:207] offset:{RC+4096}
        v_lshrrev_b32 v201, 5, v1
        v_mul_u32_u24 v201, 4608, v201
        v_and_b32 v202, 31, v1
        v_lshl_add_u32 v201, v202, 4, v201
        v_add_u32 v201, {UT}, v201
        ds_write_b128 v201, v[204:207]''')
        s.stamp('kexp')

    def load_ut(s):
        A=s.A
        s.poll_check(s.tkxf,'v233','s35','v234')
        A(f'''s_lshl_b32 s36, {CB}, 5
        s_add_u32 s36, s36, {RB}
        s_lshl_b32 s36, s36, 13
        s_lshl_b32 s37, {WV}, 11
        s_add_u32 s36, s36, s37
        s_add_u32 s36, s36, {WS_UT}
        s_lshr_b32 s32, {WV}, 1
        s_lshl_b32 s32, s32, 9
        s_add_u32 s37, s37, s32
        s_add_u32 m0, s37, {UT+512}''')
        A(f'buffer_load_dwordx4 v4, {sWS}, s36 offen sc1 lds')
        s.tkut=A(f'buffer_load_dwordx4 v4, {sWS}, s36 offen offset:1024 sc1 lds')

    def red_addr(s):
        s.A(f'''s_mul_i32 s36, {WV}, 3072
        s_add_u32 s36, s36, {RED}
        v_add_u32 v20, s36, v4''')
        for tau in range(1,4):
            s.A(f's_xor_b32 s36, {WV}, {tau}\ns_mul_i32 s36, s36, 3072\ns_add_u32 s36, s36, {RED+(tau-1)*1024}\nv_add_u32 v{20+tau}, s36, v4')
    def gemm2_pre(s):
        A=s.A
        s.red_addr()
        A(f'''s_lshl_b32 s36, {WV}, 9
        v_lshl_add_u32 v24, v1, 3, s36
        v_lshlrev_b32 v17, 16, v17
        v_and_b32 v25, 7, v1
        v_lshlrev_b32 v25, 7, v25
        s_lshl_b32 s35, {CB}, 5
        s_lshl_b32 s36, s3, 3
        s_add_u32 s35, s35, s36
        s_lshl_b32 s35, s35, 7
        s_add_u32 s35, s35, {WS_ZF}
        s_lshl_b32 s72, {CB}, 9
        s_lshl_b32 s36, s3, 4
        s_add_u32 s72, s72, s36
        s_lshl_b32 s72, s72, 10
        s_lshl_b32 s73, {RB}, 2
        s_add_u32 s73, s73, {WV}
        s_mul_i32 s73, s73, 28
        s_lshl_b32 s36, {CB}, 2
        s_add_u32 s73, s73, s36
        s_lshl_b32 s73, s73, 10
        s_add_u32 s73, s73, {WS_H}
        s_mul_i32 s75, {WV}, 7
        s_mul_i32 s36, {CB}, 112
        s_add_u32 s75, s75, s36
        s_lshl_b32 s75, s75, 10
        s_add_u32 s75, s75, {WS_WT}''')
    def red_ops(s,a,ro,extra_read=None):
        A=s.A; R={}
        R['w']=[f'ds_write_b128 v{20+tau}, v[{a+4*tau}:{a+4*tau+3}] offset:{ro}' for tau in range(1,4)]
        R['b']=['s_waitcnt lgkmcnt(0)','s_barrier']
        rd=[f'ds_read_b128 v[{p}:{p+3}], v20 offset:{ro+1024*u}' for u,p in enumerate((72,76,32))]
        if extra_read: rd.append(extra_read)
        t=rd.pop()
        def f(): s.tke=A(t)
        R['r']=rd+[f]
        R['a']=[lambda:A.wait(s.tke)]+[f'v_add_f32 v{72+r}, v{72+r}, v{76+r}' for r in range(4)]+[f'v_add_f32 v{32+r}, v{32+r}, v{a+r}' for r in range(4)]
        return R
    def wt_load(s,n):
        A=s.A; tau,k7=divmod(n,7); r=144+4*n
        if k7==0: A(f's_xor_b32 s36, {WV}, {tau}\ns_mul_i32 s36, s36, {28*1024}\ns_add_u32 s74, s75, s36')
        if k7==4: A('s_add_u32 s74, s74, 4096')
        s.tkwt=A(f'buffer_load_dwordx4 v[{r}:{r+3}], v4, {sWS}, s74 offen offset:{(k7%4)*1024} sc1')
    def gemm2(s):
        A=s.A; RING=80; ACC=(40,56); LEAD=s.lead
        tk={}
        def ld(n):
            if n>=128:
                s.wt_load(n-128); return
            j,kk=divmod(n,16); r=RING+4*kk
            if kk%4==0: A(f's_add_u32 s34, s72, {j*65536+kk*1024}')
            tk[n]=A(f'buffer_load_dwordx4 v[{r}:{r+3}], v4, {sWS}, s34 offen offset:{(kk%4)*1024} sc1')
        s.poll_check(s.tkzf,'v25','s35','v29'); s.stamp('z2n_seen')
        for n in range(LEAD): ld(n)
        def epi(j):
            R=s.red_ops(ACC[j&1],(j&1)*12288,f'ds_read_b64 v[36:37], v24 offset:{Z1+j*2048}')
            h=28+2*(j&1)
            E=R['a']+[f'v_add_f32 v{72+r}, v{72+r}, v17' for r in range(4)]+[f'v_add_f32 v{72+r}, v{72+r}, v{32+r}' for r in range(4)]
            E+='''v_lshlrev_b32 v32, 16, v36
            v_cvt_pk_bf16_f32 v76, v72, v73
            v_and_b32 v33, 0xffff0000, v36
            v_cvt_pk_bf16_f32 v77, v74, v75
            v_lshlrev_b32 v34, 16, v37
            v_and_b32 v35, 0xffff0000, v37
            v_lshlrev_b32 v72, 16, v76
            v_and_b32 v73, 0xffff0000, v76
            v_lshlrev_b32 v74, 16, v77
            v_and_b32 v75, 0xffff0000, v77'''.split('\n')
            E+=[f'v_mul_f32 v{72+r}, v{72+r}, v{32+r}' for r in range(4)]
            E+=[f'v_cvt_pk_bf16_f32 v{h}, v72, v73',f'v_cvt_pk_bf16_f32 v{h+1}, v74, v75']
            if j&1: E.append(f'buffer_store_dwordx4 v[28:31], v4, {sWS}, s73 offen offset:{(j>>1)*1024} sc1')
            return {1:R['w'],4:R['b'],5:R['r'],8:E}
        for j in range(8):
            a=ACC[j&1]; ep=epi(j-1) if j else {}; q=[]
            if j==2 and s.conv_first: ep[6]=[lambda:s.flag(s.afl)]
            for kk in range(16):
                n=16*j+kk; r=RING+4*kk; q+=ep.get(kk,[])
                mf=[]
                for tau in range(4):
                    d=f'v[{a+4*tau}:{a+4*tau+3}]'; m=tau*16+kk
                    mf.append(f'v_mfma_f32_16x16x32_bf16 {d}, v[{r}:{r+3}], a[{4*m}:{4*m+3}], {"0" if kk==0 else d}')
                fill={0:[lambda:ld(n+LEAD)],1:q[:2],2:q[2:4],3:q[4:5]}; q=q[5:]
                s.weave(mf,fill,{0:[lambda:A.wait(tk[n])]})
                if s.fine and kk==15 and j<7: s.stamp(f'pass{j}')
            assert not q
        s.stamp('g2loop')
        ep=epi(7)
        for k in (1,4,5,8):
            for x in ep[k]: s.emit(x)
        s.publish(f's_lshl_b32 s34, {RB}, 3\ns_add_u32 s34, s34, {CB}\ns_lshl_b32 s34, s34, 7\ns_add_u32 s34, s34, {WS_HF}')
        s.stamp('h_pub')
        for n in range(LEAD,28): s.wt_load(n)

    def conv(s):
        A=s.A; F='v' if s.conv_first else 'a'
        A(f'''s_lshr_b32 s32, {WV}, 1
        s_mul_i32 s36, s32, {4*4160}
        s_add_u32 s36, s36, {RC+4056-3584-448}
        v_and_b32 v30, 3, v2
        v_mul_u32_u24 v30, 4160, v30
        v_lshrrev_b32 v31, 2, v2
        v_lshlrev_b32 v31, 3, v31
        v_sub_u32 v30, v30, v31
        v_lshl_add_u32 v30, v3, 4, v30
        v_add_u32 v30, s36, v30
        s_mul_i32 s36, s32, 4608
        s_add_u32 s36, s36, {UT+480-448}
        v_lshlrev_b32 v31, 5, v2
        v_lshl_add_u32 v32, v3, 3, v31
        v_lshl_add_u32 v31, v3, 4, v31
        v_add_u32 v31, s36, v31
        s_add_u32 s36, s36, {512-32}
        v_add_u32 v33, s36, v32
        s_lshl_b32 s36, {CB}, 5
        s_add_u32 s36, s36, {RB}
        s_lshl_b32 s36, s36, 1
        s_add_u32 s36, s36, s32
        s_lshl_b32 s36, s36, 12
        s_add_u32 s77, s36, {WS_AT}''')
        A(f'''s_lshl_b32 s36, {WV}, 11
        s_add_u32 s36, s36, {KC}
        v_add_u32 v34, s36, v32
        v_add_u32 v35, s36, v4
        v_and_b32 v36, 31, v1
        v_lshlrev_b32 v36, 4, v36
        v_lshrrev_b32 v37, 5, v1''')
        A.wait(s.tkut); A('s_waitcnt lgkmcnt(0)\ns_barrier')
        lo=s.lab('cvo'); le=s.lab('cve')
        A(f's_and_b32 s33, {WV}, 1\ns_cmp_lg_u32 s33, 0\ns_cbranch_scc1 {lo}')
        st0=(A.vm,A.vmd,A.lg,A.lgd,list(s.q),dict(s.tka),dict(s.tkt))
        for var,cs in enumerate(((0,3,4,7),(1,2,5,6))):
            A.vm,A.vmd,A.lg,A.lgd=st0[:4]; s.q=list(st0[4]); s.tka=dict(st0[5]); s.tkt=dict(st0[6])
            if var: A.label(lo)
            nm=cs[-1]+1
            base=lambda rho:64+64*(rho&1)
            tkr={}
            def reads(rho):
                out=[]; b=base(rho)
                def mk(t,key):
                    def f(): tkr[(rho,key)]=A(t)
                    return f
                def rb(m): return [mk(f'ds_read_b128 v[{b+32+4*m}:{b+35+4*m}], v31 offset:{512*m+64*(7-rho)}',('b',m))]
                def ra(m):
                    o=512*(7-m)+64*(7-rho)
                    return [mk(f'ds_read_b64 v[{b+4*m}:{b+4*m+1}], v30 offset:{o}',('x',m)),mk(f'ds_read_b64 v[{b+4*m+2}:{b+4*m+3}], v30 offset:{o+8}',('a',m))]
                have=set()
                for ci,c,mu in order:
                    if ('a',mu) not in have: out+=ra(mu); have.add(('a',mu))
                    if ('b',c-mu) not in have: out+=rb(c-mu); have.add(('b',c-mu))
                return out
            order=[(ci,c,mu) for mu in range(nm) for ci,c in enumerate(cs) if mu<=c]
            for t in reads(0): t()
            for rho in range(8):
                b=base(rho); nxt=reads(rho+1) if rho<7 else []
                def zf(): s.tkzf=s.poll_issue('v25','s35','v29')
                nxt=nxt+[s.bg,None,s.bg,None,s.bg,None,s.bg,None]
                if rho==6: nxt=nxt+[s.bg_flush,zf]
                if rho==7: nxt=[f'ds_read_b64 v[{56+2*ci}:{57+2*ci}], v33 offset:{512*c}' for ci,c in enumerate(cs)]
                mf=[]; seen=set(); pre={}
                for k,(ci,c,mu) in enumerate(order):
                    d=f'v[{40+4*ci}:{43+4*ci}]'; first=(rho==0 and ci not in seen); seen.add(ci)
                    mf.append(f'v_mfma_f32_16x16x32_bf16 {d}, v[{b+4*mu}:{b+4*mu+3}], v[{b+32+4*(c-mu)}:{b+35+4*(c-mu)}], {"0" if first else d}')
                    if k in (0,6):
                        last=order[5] if k==0 else order[-1]
                        need=[(rho,('a',m)) for _,_,m in order[:(6 if k==0 else 99)]]+[(rho,('b',cc-m)) for _,cc,m in order[:(6 if k==0 else 99)]]
                        pre[k]=[lambda need=need:A.wait(*[tkr[x] for x in need])]
                fill={k:nxt[2*k:2*k+2] for k in range(len(order))}
                fill[len(order)-1]=nxt[2*(len(order)-1):]
                s.weave(mf,fill,pre)
            A('s_waitcnt lgkmcnt(0)')
            for ci,c in enumerate(cs):
                y=40+4*ci; u=56+2*ci
                A(f'''v_lshlrev_b32 v64, 16, v{u}
                v_and_b32 v65, 0xffff0000, v{u}
                v_lshlrev_b32 v66, 16, v{u+1}
                v_and_b32 v67, 0xffff0000, v{u+1}
                v_fmac_f32 v{y}, s39, v64
                v_fmac_f32 v{y+1}, s39, v65
                v_fmac_f32 v{y+2}, s39, v66
                v_fmac_f32 v{y+3}, s39, v67
                v_cvt_pk_bf16_f32 v{u}, v{y}, v{y+1}
                v_cvt_pk_bf16_f32 v{u+1}, v{y+2}, v{y+3}
                ds_write_b64 v34, v[{u}:{u+1}] offset:{512*ci}''')
            A(f'''v_mul_u32_u24 v38, {512*(cs[1]-cs[0])}, v37
            v_mul_u32_u24 v39, {512*(cs[3]-cs[2])}, v37
            v_add_u32 v38, v38, v36
            v_add_u32 v39, v39, v36
            s_waitcnt lgkmcnt(0)
            ds_read_b128 v[64:67], v35
            ds_read_b128 v[68:71], v35 offset:1024
            s_waitcnt lgkmcnt(1)
            buffer_store_dwordx4 v[64:67], v38, {sWS}, s77 offen offset:{512*cs[0]} sc1
            s_waitcnt lgkmcnt(0)
            buffer_store_dwordx4 v[68:71], v39, {sWS}, s77 offen offset:{512*cs[2]} sc1''')
            if var==0: A(f's_branch {le}')
        A.label(le)
        s.afl=f's_lshl_b32 s34, {CB}, 5\ns_add_u32 s34, s34, {RB}\ns_lshl_b32 s34, s34, 7\ns_add_u32 s34, s34, {WS_AF}'
        if not s.conv_first: s.publish(s.afl)
        s.stamp('conv')

    def gemm3(s):
        A=s.A; WTR=144; ACC=(40,56)
        A(f'''v_min_u32 v110, 6, v2
        v_lshlrev_b32 v110, 7, v110
        s_lshl_b32 s35, {RB}, 10
        s_add_u32 s35, s35, {WS_HF}
        s_mul_i32 s72, {RB}, 112
        s_mul_i32 s36, {WV}, 7
        s_add_u32 s72, s72, s36
        s_lshl_b32 s72, s72, 10
        s_add_u32 s72, s72, {WS_H}
        s_lshl_b32 s36, {RB}, 8
        s_add_u32 s36, s36, {WS_GATE}
        v_lshlrev_b32 v111, 2, v19''')
        for T in range(4): A(f'buffer_load_dword v{96+T}, v111, {sWS}, s36 offen offset:{4*(32*(T>>1)+4*(T&1))} sc1')
        A(f'''v_and_b32 v100, 1, v2
        v_lshlrev_b32 v100, 4, v100
        v_mov_b32 v101, 0xffff
        v_lshlrev_b32 v100, v100, v101
        v_lshrrev_b32 v101, 2, v2
        v_cmp_eq_u32 vcc, v101, v3
        v_cndmask_b32 v100, 0, v100, vcc
        v_and_b32 v101, 2, v2
        v_cmp_eq_u32 vcc, 0, v101
        v_cndmask_b32 v101, v100, v5, vcc
        v_cndmask_b32 v100, v5, v100, vcc
        v_mul_u32_u24 v108, 896, v19
        v_lshl_add_u32 v108, v3, 3, v108
        s_mul_i32 s73, {RB}, 57344
        s_lshl_b32 s36, {CB}, 7
        s_add_u32 s73, s73, s36
        s_lshl_b32 s36, {WV}, 5
        s_add_u32 s73, s73, s36
        v_lshlrev_b32 v109, 12, v2
        v_lshl_add_u32 v109, v3, 4, v109
        s_lshl_b32 s75, {CB}, 2
        s_add_u32 s75, s75, {WV}
        s_lshl_b32 s75, s75, 16
        s_lshl_b32 s36, {RB}, 7
        s_add_u32 s75, s75, s36
        s_add_u32 s75, s75, {WS_AT}
        s_lshl_b32 s77, {CB}, 12
        s_add_u32 s77, s77, {WS_AF}
        v_and_b32 v111, 31, v1
        v_lshlrev_b32 v111, 7, v111''')
        def a_part():
            s.poll('v111','s77','v18'); s.stamp('a_seen')
            for h in range(2): s.tkat=A(f'buffer_load_dwordx4 v[{112+4*h}:{115+4*h}], v109, {sWS}, s75 offen offset:{64*h} sc1')
        if s.conv_first: a_part()
        def diag(T):
            w=120+6*(T&1)
            return [f'v_cvt_pk_bf16_f32 v107, v{96+T}, v{96+T}',f'v_and_b32 v{w+2}, v107, v100',f'v_and_b32 v{w+3}, v107, v101']
        for w in (120,121,124,125,126,127,130,131): A(f'v_mov_b32 v{w}, 0')
        s.poll('v110','s35','v18'); s.stamp('h_seen')
        tk={}
        def ld(n):
            if n>=28: return
            T,kk=divmod(n,7)
            if kk%4==0: A(f's_add_u32 s34, s72, {T*28*1024+kk*1024}')
            tk[n]=A(f'buffer_load_dwordx4 a[{4*n}:{4*n+3}], v4, {sWS}, s34 offen offset:{(kk%4)*1024} sc1')
        LEAD=s.lead
        for n in range(LEAD): ld(n)
        def fin(T):
            o=80+4*T; w=120+6*(T&1)+2*(1-(T&1))
            return [f'v_mfma_f32_16x16x32_bf16 v[{o}:{o+3}], v[{112+4*(T>>1)}:{115+4*(T>>1)}], v[{w}:{w+3}], v[{o}:{o+3}]']
        def out(T):
            o=80+4*T
            return [f'v_cvt_pk_bf16_f32 v{o}, v{o}, v{o+1}',f'v_cvt_pk_bf16_f32 v{o+1}, v{o+2}, v{o+3}',f's_add_u32 s36, s73, {896*(32*(T>>1)+4*(T&1))}',
                    f'buffer_store_dwordx2 v[{o}:{o+1}], v108, {sO}, s36 offen']
        def epi(T):
            R=s.red_ops(ACC[T&1],(T&1)*12288)
            E=R['a']+[f'v_sub_f32 v76, 1.0, v{96+T}']+[f'v_add_f32 v{72+r}, v{72+r}, v{32+r}' for r in range(4)]+[f'v_mul_f32 v{80+4*T+r}, v{72+r}, v76' for r in range(4)]
            return {1:R['w'],2:R['b']+R['r'],4:E}
        for T in range(4):
            a=ACC[T&1]; ep=epi(T-1) if T else {}; q=[]
            if s.conv_first and T>=2: ep[0]=diag(T-2); ep[3]=fin(T-2); ep[4]=ep[4]+out(T-2)
            for kk in range(7):
                n=T*7+kk; q+=ep.get(kk,[]); mf=[]
                for tau in range(4):
                    d=f'v[{a+4*tau}:{a+4*tau+3}]'; r=WTR+4*(tau*7+kk)
                    mf.append(f'v_mfma_f32_16x16x32_bf16 {d}, v[{r}:{r+3}], a[{4*n}:{4*n+3}], {"0" if kk==0 else d}')
                k=7 if kk<6 else len(q)
                fill={0:[lambda:ld(n+LEAD)]+q[:1],1:q[1:3],2:q[3:5],3:q[5:k]}; q=q[k:]
                s.weave(mf,fill,{0:[lambda:A.wait(tk[n])]})
        ep=epi(3)
        todo=(2,3) if s.conv_first else (0,1,2,3)
        for x in ep[1]: s.emit(x)
        if s.conv_first:
            for x in diag(2)+diag(3)+fin(2): s.emit(x)
        for x in ep[2]: s.emit(x)
        if s.conv_first:
            for x in out(2): s.emit(x)
        for x in ep[4]: s.emit(x)
        s.stamp('g3')
        if s.conv_first:
            for x in fin(3)+out(3): s.emit(x)
        else:
            a_part(); A.wait(s.tkat)
            for T in range(4):
                for x in diag(T)+fin(T): s.emit(x)
            for T in range(4):
                for x in out(T): s.emit(x)
        s.stamp('done')

    def dump_stamps(s):
        A=s.A
        if s.diag:
            A(f's_lshl_b32 s34, s2, 2\ns_add_u32 s34, s34, {WV}\ns_lshl_b32 s34, s34, 8\ns_add_u32 s34, s34, {WS_DBG}\nv_lshlrev_b32 v6, 2, v1')
            A(f'buffer_store_dword v26, v6, {sWS}, s34 offen')
    def build(s):
        A=s.A
        assert s.conv_first
        s.entry(); s.prologue(); s.phase1(); s.kgen(); s.load_ut()
        s.kexpand()
        s.gemm2_pre()
        s.conv()
        s.gemm2()
        s.gemm3()
        s.dump_stamps()
        if s.spin:
            A.label('L_spin'); A(f's_memrealtime s[78:79]\ns_waitcnt lgkmcnt(0)\ns_sub_u32 s78, s78, {NONCE}\ns_cmp_lt_u32 s78, {s.spin}\ns_cbranch_scc1 L_spin')
        A.label('L_end'); A('s_endpgm')
        s.aux()
        A.label('L_codeend')
        A.raw(f'''.section .rodata,"a"
.p2align 6
.amdhsa_kernel {NAME}
  .amdhsa_next_free_vgpr 512
  .amdhsa_next_free_sgpr 102
  .amdhsa_accum_offset 256
  .amdhsa_group_segment_fixed_size 0
  .amdhsa_kernarg_size 128
  .amdhsa_user_sgpr_count 2
  .amdhsa_user_sgpr_kernarg_segment_ptr 1
  .amdhsa_system_sgpr_workgroup_id_x 1
.end_amdhsa_kernel''')
        return A.finish()

if __name__=='__main__':
    import argparse
    ap=argparse.ArgumentParser(); ap.add_argument('out'); ap.add_argument('--diag',action='store_true'); ap.add_argument('--dump',action='store_true'); ap.add_argument('--conv_first',action='store_true'); ap.add_argument('--spin',type=int,default=0); ap.add_argument('--fine',action='store_true'); ap.add_argument('--lead',type=int,default=11); ap.add_argument('--exp',default='')
    a=ap.parse_args()
    g=Gen(a.diag,a.dump,a.conv_first,a.spin); g.fine=a.fine; g.lead=a.lead; g.exp=a.exp; t=g.build(); open(a.out,'w').write(t)
    if a.diag: open(a.out+'.stamps','w').write(' '.join(g.stn)+'\n'+' '.join(g.auxstn))
    print('nops inserted',g.A.nops,'lines',t.count('\n'))
```
